```python
import torch

def _softmax(x, axis=-1):
    return torch.softmax(x, dim=axis)
def _gelu(x):
    return torch.nn.functional.gelu(x, approximate="tanh")
def _silu(x):
    return torch.nn.functional.silu(x)
def _sigmoid(x):
    return torch.sigmoid(x)
def _layernorm(x, axis=-1, eps=1e-5):
    m = x.mean(dim=axis, keepdim=True)
    v = x.var(dim=axis, keepdim=True, unbiased=False)
    return (x - m) / torch.sqrt(v + eps)
def _scatter_add(tgt, idx, src, axis=0):
    return tgt.clone().index_add_(axis, idx, src)
def _segment_sum(src, seg, n):
    out = torch.zeros((n,) + src.shape[1:], dtype=src.dtype)
    return out.index_add_(0, seg, src)
def _pad(x, pw):
    flat = tuple(v for pair in reversed(pw) for v in pair)
    return torch.nn.functional.pad(x, flat)

kernel_name = 'sequential_preLN__sliding_block_cached__dense_activation_squared_relu__decode'

def setup_inputs():

    _w = (lambda a: (lambda t: t.to(torch.bfloat16) if t.is_floating_point() else t)(torch.as_tensor(a)))
    def _A_setup():
        B, Sq, D = 1, 1, 576
        Hq, Hkv, Sk, Dh = 32, 16, 65536, 128
        assert Hq % Hkv == 0, (Hq, Hkv)
        return {
            "x": _w((lambda *s: torch.randn(*s, dtype=torch.bfloat16) * 0.05)(B, Sq, D)),
            "k_cache": _w((lambda *s: torch.randn(*s, dtype=torch.bfloat16) * 3.2)(B, Hkv, Sk, Dh)),
            "v_cache": _w((lambda *s: torch.randn(*s, dtype=torch.bfloat16) * 0.4)(B, Hkv, Sk, Dh)),
            "wq": _w((lambda *s: torch.randn(*s, dtype=torch.bfloat16) * 3.2)(D, Hq * Dh) * (D ** -0.5)),
            "wo": _w((lambda *s: torch.randn(*s, dtype=torch.bfloat16) * 0.4)(Hq * Dh, D) * ((Hq * Dh) ** -0.5)),
        }
    _A_in = _A_setup()

    def _B_setup():
        B, S, D, F = 1, 1, 576, 4608
        return {
            "x": _w((lambda *s: torch.randn(*s, dtype=torch.bfloat16) * 0.05)(B, S, D)),
            "w1": _w((lambda *s: torch.randn(*s, dtype=torch.bfloat16) * 0.05)(D, F)),
            "b1": _w((lambda *s: torch.randn(*s, dtype=torch.bfloat16) * 0.8)(F)),
            "w2": _w((lambda *s: torch.randn(*s, dtype=torch.bfloat16) * 0.05)(F, D)),
            "b2": _w((lambda *s: torch.randn(*s, dtype=torch.bfloat16) * 3.2)(D)),
        }
    _B_in = _B_setup()

    return {
        "A_x": _A_in["x"],
        "A_k_cache": _A_in["k_cache"],
        "A_v_cache": _A_in["v_cache"],
        "A_wq": _A_in["wq"],
        "A_wo": _A_in["wo"],
        "B_x": _B_in["x"],
        "B_w1": _B_in["w1"],
        "B_b1": _B_in["b1"],
        "B_w2": _B_in["w2"],
        "B_b2": _B_in["b2"],
    }

def reference(A_x, A_k_cache, A_v_cache, A_wq, A_wo, B_x, B_w1, B_b1, B_w2, B_b2):
    def _A_ref(x, k_cache, v_cache, wq, wo):
        B, Sq, D = x.shape
        Hq, Dh = 32, 128
        Hkv, Sk = k_cache.shape[1], k_cache.shape[2]
        W = min(4096, max(256, Sk // 4))
        rep = Hq // Hkv
        q = (lambda x, *d: x.permute(*d))((x @ wq).reshape(B, Sq, Hq, Dh), 0, 2, 1, 3)
        k = (lambda x, n, axis: torch.repeat_interleave(x, n, dim=axis))(k_cache[:, :, Sk - W:, :], rep, axis=1)
        v = (lambda x, n, axis: torch.repeat_interleave(x, n, dim=axis))(v_cache[:, :, Sk - W:, :], rep, axis=1)
        scores = torch.einsum("bhqd,bhkd->bhqk", q, k) * (Dh ** -0.5)
        p = _softmax(scores, axis=-1)
        o = torch.einsum("bhqk,bhkd->bhqd", p, v)
        return (lambda x, *d: x.permute(*d))(o, 0, 2, 1, 3).reshape(B, Sq, Hq * Dh) @ wo

    def _B_ref(x, w1, b1, w2, b2):
        h = torch.einsum("bsd,df->bsf", x, w1) + b1
        zero = torch.zeros_like(h)
        r = torch.where(h > zero, h, zero)
        h = r * r
        out = torch.einsum("bsf,fd->bsd", h, w2) + b2
        return out

    x = A_x
    h = x + _A_ref(_layernorm(x, axis=-1), A_k_cache, A_v_cache, A_wq, A_wo)
    h2 = h + _B_ref(_layernorm(h, axis=-1), B_w1, B_b1, B_w2, B_b2)
    return h2
```

```python
NAME = "sequential_preLN__sliding_block_cached__dense_activation_squared_relu__decode"
HDR = open(f"cdna_kernels/{NAME}.s.ref").read().split("; Override launch geometry")[0]

L = []
def e(s=""):
    L.append(s)

WS_Q = 0
WS_OP = 65536
WS_ML = 524288
WS_REP1 = 1048576
WS_REP2 = WS_REP1 + 36864
WS_H = WS_REP1 + 73728
WS_BYTES = 1073741824

C_SCALE = 0x3e0293a5
import struct, math
def f2h(x): return "0x%08x" % struct.unpack("<I", struct.pack("<f", x))[0]
CS = f2h(128 ** -0.5 * math.log2(math.e))

def srd(dst, ptr, nbytes):
    e(f"  s_mov_b32 s{dst}, s{ptr}")
    e(f"  s_and_b32 s{dst+1}, s{ptr+1}, 0xffff")
    e(f"  s_mov_b32 s{dst+2}, {nbytes}")
    e(f"  s_mov_b32 s{dst+3}, 0x00020000")

def wave_sum(v, t, s):
    e("  s_nop 1")
    e(f"  v_add_f32_dpp v{t}, v{v}, v{v} quad_perm:[1,0,3,2] row_mask:0xf bank_mask:0xf")
    e("  s_nop 1")
    e(f"  v_add_f32_dpp v{v}, v{t}, v{t} quad_perm:[2,3,0,1] row_mask:0xf bank_mask:0xf")
    e("  s_nop 1")
    e(f"  v_add_f32_dpp v{t}, v{v}, v{v} row_half_mirror row_mask:0xf bank_mask:0xf")
    e("  s_nop 1")
    e(f"  v_add_f32_dpp v{v}, v{t}, v{t} row_mirror row_mask:0xf bank_mask:0xf")
    e("  s_nop 1")
    for k in range(4):
        e(f"  v_readlane_b32 s{s+k}, v{v}, {16*k}")
    e("  s_nop 1")
    e(f"  v_mov_b32 v{v}, s{s}")
    for k in range(1, 4):
        e(f"  v_add_f32 v{v}, s{s+k}, v{v}")

def kernel_begin(name):
    e(".text")
    e(f".globl {name}")
    e(".p2align 8")
    e(f".type {name},@function")
    e(f"{name}:")

def kernel_desc(name, vgpr, sgpr):
    acc = (vgpr + 3) // 4 * 4
    e('.section .rodata,"a"')
    e(".p2align 6")
    e(f".amdhsa_kernel {name}")
    e(f"  .amdhsa_next_free_vgpr {vgpr}")
    e(f"  .amdhsa_next_free_sgpr {sgpr}")
    e(f"  .amdhsa_accum_offset {acc}")
    e("  .amdhsa_group_segment_fixed_size 0")
    e("  .amdhsa_kernarg_size 104")
    e("  .amdhsa_user_sgpr_count 2")
    e("  .amdhsa_user_sgpr_kernarg_segment_ptr 1")
    e("  .amdhsa_system_sgpr_workgroup_id_x 1")
    e(".end_amdhsa_kernel")

def ln_stats(vals, n, vsum, vt, s, vmean, vrstd):
    e(f"  v_add_f32 v{vsum}, v{vals[0]}, v{vals[1]}")
    for v in vals[2:]:
        e(f"  v_add_f32 v{vsum}, v{vsum}, v{v}")
    wave_sum(vsum, vt, s)
    e(f"  v_mul_f32 v{vmean}, {f2h(1.0/n)}, v{vsum}")
    e(f"  v_sub_f32 v{vt}, v{vals[0]}, v{vmean}")
    e(f"  v_mul_f32 v{vsum}, v{vt}, v{vt}")
    for v in vals[1:]:
        e(f"  v_sub_f32 v{vt}, v{v}, v{vmean}")
        e(f"  v_fmac_f32 v{vsum}, v{vt}, v{vt}")
    wave_sum(vsum, vt, s)
    e(f"  v_mov_b32 v{vt}, {f2h(1e-5)}")
    e(f"  v_fmac_f32 v{vt}, {f2h(1.0/n)}, v{vsum}")
    e(f"  v_rsq_f32 v{vrstd}, v{vt}")
    e("  s_nop 1")

e(HDR.rstrip())
e("; @launch kernel=k1_qproj_kernel grid=(64,1,1) block=(512,1,1) lds=16384")
e("; @launch kernel=k2_attn_kernel grid=(256,1,1) block=(512,1,1) lds=33024")
e("; @launch kernel=k3_wo_kernel grid=(256,1,1) block=(576,1,1) lds=18432")
e("; @launch kernel=k4_ffn_kernel grid=(144,1,1) block=(576,1,1) lds=24576")
e("; @launch kernel=k5_fin_kernel grid=(1,1,1) block=(576,1,1) lds=0")
e('.amdgcn_target "amdgcn-amd-amdhsa--gfx950"')

kernel_begin("k1_qproj_kernel")
e("  s_cmp_ge_u32 s2, 64")
e("  s_cbranch_scc1 K1_END")
e("  s_load_dwordx2 s[4:5], s[0:1], 0")
e("  s_load_dwordx2 s[6:7], s[0:1], 24")
e("  s_load_dwordx2 s[8:9], s[0:1], 96")
e("  s_waitcnt lgkmcnt(0)")
srd(12, 4, 1152)
srd(16, 6, 576 * 8192)
srd(20, 8, WS_BYTES)
e("  v_and_b32 v1, 63, v0")
e("  v_lshlrev_b32 v2, 1, v1")
for j in range(9):
    e(f"  buffer_load_ushort v{10+j}, v2, s[12:15], 0 offen offset:{128*j}")
e("  v_lshrrev_b32 v3, 3, v0")
e("  v_lshlrev_b32 v5, 1, v3")
for i in range(9):
    e(f"  buffer_load_ushort v{20+i}, v5, s[12:15], 0 offen offset:{128*i}")
e("  v_lshlrev_b32 v4, 13, v3")
e("  v_and_b32 v5, 7, v0")
e("  v_lshlrev_b32 v5, 4, v5")
e("  v_add_u32 v4, v4, v5")
e("  s_lshl_b32 s24, s2, 7")
for i in range(9):
    e(f"  s_add_u32 s{25+i}, s24, {524288*i}")
for i in range(9):
    e(f"  buffer_load_dwordx4 v[{32+4*i}:{35+4*i}], v4, s[16:19], s{25+i} offen")
e("  s_waitcnt vmcnt(9)")
for j in range(9):
    e(f"  v_lshlrev_b32 v{10+j}, 16, v{10+j}")
    e(f"  v_lshlrev_b32 v{20+j}, 16, v{20+j}")
ln_stats(list(range(10, 19)), 576, 6, 7, 40, 8, 9)
for i in range(9):
    e(f"  v_sub_f32 v{20+i}, v{20+i}, v8")
    e(f"  v_mul_f32 v{20+i}, v{20+i}, v9")
for k in range(8):
    e(f"  v_mov_b32 v{80+k}, 0")
for i in range(9):
    e(f"  s_waitcnt vmcnt({8-i})")
    for k in range(4):
        d = 32 + 4 * i + k
        e(f"  v_lshlrev_b32 v6, 16, v{d}")
        e(f"  v_and_b32 v7, 0xffff0000, v{d}")
        e(f"  v_fmac_f32 v{80+2*k}, v6, v{20+i}")
        e(f"  v_fmac_f32 v{81+2*k}, v7, v{20+i}")
e("  v_lshlrev_b32 v4, 8, v3")
e("  v_and_b32 v5, 7, v0")
e("  v_lshlrev_b32 v5, 5, v5")
e("  v_add_u32 v4, v4, v5")
e("  ds_write_b128 v4, v[80:83]")
e("  ds_write_b128 v4, v[84:87] offset:16")
e("  s_waitcnt lgkmcnt(0)")
e("  s_barrier")
e("  v_cmp_gt_u32 vcc, 64, v0")
e("  s_and_saveexec_b64 s[36:37], vcc")
e("  s_cbranch_execz K1_END")
e("  v_lshlrev_b32 v4, 2, v0")
for r in range(64):
    e(f"  ds_read_b32 v{10 + (r % 16)}, v4 offset:{256*r}")
    if r % 16 == 15:
        e("  s_waitcnt lgkmcnt(0)")
        for k in range(16):
            if r == 15 and k == 0:
                e("  v_mov_b32 v6, v10")
            else:
                e(f"  v_add_f32 v6, v6, v{10+k}")
e("  s_lshl_b32 s24, s2, 8")
e(f"  buffer_store_dword v6, v4, s[20:23], s24 offen offset:{WS_Q}")
e("K1_END:")
e("  s_endpgm")
kernel_desc("k1_qproj_kernel", 96, 48)

kernel_begin("k2_attn_kernel")
e("  s_cmp_ge_u32 s2, 256")
e("  s_cbranch_scc1 K2_END")
e("  s_load_dwordx2 s[4:5], s[0:1], 8")
e("  s_load_dwordx2 s[6:7], s[0:1], 16")
e("  s_load_dwordx2 s[8:9], s[0:1], 96")
e("  s_waitcnt lgkmcnt(0)")
srd(12, 4, 268435456)
srd(16, 6, 268435456)
srd(20, 8, WS_BYTES)
e("  s_and_b32 s30, s2, 7")
e("  s_lshl_b32 s30, s30, 1")
e("  s_lshr_b32 s31, s2, 3")
e("  s_and_b32 s31, s31, 1")
e("  s_or_b32 s30, s30, s31")
e("  s_lshr_b32 s31, s2, 4")
e("  s_lshl_b32 s32, s30, 24")
e("  s_lshl_b32 s33, s31, 16")
e("  s_add_u32 s32, s32, s33")
e("  s_add_u32 s32, s32, 15728640")
e("  s_add_u32 s33, s32, 4096")
e("  s_cmp_ge_u32 s2, 9")
e("  s_cbranch_scc1 K2_NOZ")
e("  v_mov_b32 v4, 0")
e("  v_mov_b32 v5, 0")
e("  v_mov_b32 v6, 0")
e("  v_mov_b32 v7, 0")
e("  v_lshlrev_b32 v1, 4, v0")
e("  s_lshl_b32 s34, s2, 13")
e(f"  s_add_u32 s34, s34, {WS_REP1}")
e("  buffer_store_dwordx4 v[4:7], v1, s[20:23], s34 offen")
e("K2_NOZ:")
e("  v_and_b32 v1, 63, v0")
e("  v_lshrrev_b32 v2, 6, v0")
e("  v_and_b32 v3, 15, v0")
e("  v_lshlrev_b32 v3, 5, v3")
e("  s_lshl_b32 s34, s30, 10")
for k in range(4):
    e(f"  buffer_load_dwordx4 v[{96+4*k}:{99+4*k}], v3, s[20:23], s34 offen offset:{WS_Q + (k//2)*512 + (k%2)*16}")
e("  v_lshlrev_b32 v4, 13, v2")
e("  v_lshlrev_b32 v5, 4, v1")
e("  v_add_u32 v4, v4, v5")
for i in range(8):
    e(f"  buffer_load_dwordx4 v[{32+4*i}:{35+4*i}], v4, s[12:15], s{32 + i//4} offen offset:{(i%4)*1024}")
for i in range(8):
    e(f"  buffer_load_dwordx4 v[{64+4*i}:{67+4*i}], v4, s[16:19], s{32 + i//4} offen offset:{(i%4)*1024}")
e("  s_waitcnt vmcnt(16)")
for k in range(8):
    e(f"  v_cvt_pk_bf16_f32 v{112+k}, v{96+2*k}, v{97+2*k}")
e("  s_nop 1")
for i in range(8):
    e(f"  s_waitcnt vmcnt({15-i})")
    for k in range(4):
        for h in range(2):
            src2 = "0" if k == 0 else f"v{120+8*h+i}"
            e(f"  v_dot2_f32_bf16 v{120+8*h+i}, v{32+4*i+k}, v{112+4*h+k}, {src2}")
e("  s_nop 3")
steps = ["quad_perm:[1,0,3,2]", "quad_perm:[2,3,0,1]", "row_half_mirror", "row_mirror"]
for st in steps:
    for r in range(16):
        e(f"  v_add_f32_dpp v{120+r}, v{120+r}, v{120+r} {st} row_mask:0xf bank_mask:0xf")
e("  s_nop 1")
for h in range(2):
    b = 120 + 8 * h
    e(f"  v_max3_f32 v{152+h}, v{b}, v{b+1}, v{b+2}")
    e(f"  v_max3_f32 v{152+h}, v{152+h}, v{b+3}, v{b+4}")
    e(f"  v_max3_f32 v{152+h}, v{152+h}, v{b+5}, v{b+6}")
    e(f"  v_max_f32 v{152+h}, v{152+h}, v{b+7}")
e("  s_nop 1")
for h in range(2):
    for k in range(4):
        e(f"  v_readlane_b32 s{40+4*h+k}, v{152+h}, {16*k}")
e("  s_nop 1")
for h in range(2):
    e(f"  v_mov_b32 v{152+h}, s{40+4*h}")
    for k in range(1, 4):
        e(f"  v_max_f32 v{152+h}, s{40+4*h+k}, v{152+h}")
e(f"  v_mov_b32 v154, {CS}")
for h in range(2):
    for i in range(8):
        r = 120 + 8 * h + i
        e(f"  v_sub_f32 v{r}, v{r}, v{152+h}")
        e(f"  v_mul_f32 v{r}, v154, v{r}")
        e(f"  v_exp_f32 v{r}, v{r}")
e("  s_nop 1")
for h in range(2):
    b = 120 + 8 * h
    e(f"  v_add_f32 v{155+h}, v{b}, v{b+1}")
    for i in range(2, 8):
        e(f"  v_add_f32 v{155+h}, v{155+h}, v{b+i}")
e("  s_nop 1")
for h in range(2):
    for k in range(4):
        e(f"  v_readlane_b32 s{40+4*h+k}, v{155+h}, {16*k}")
e("  s_nop 1")
for h in range(2):
    e(f"  v_mov_b32 v{155+h}, s{40+4*h}")
    for k in range(1, 4):
        e(f"  v_add_f32 v{155+h}, s{40+4*h+k}, v{155+h}")
for k in range(16):
    e(f"  v_mov_b32 v{136+k}, 0")
for i in range(8):
    e(f"  s_waitcnt vmcnt({7-i})")
    for k in range(4):
        d = 64 + 4 * i + k
        e(f"  v_lshlrev_b32 v{160+2*k}, 16, v{d}")
        e(f"  v_and_b32 v{161+2*k}, 0xffff0000, v{d}")
    for h in range(2):
        pr = 120 + 8 * h + (i & ~1)
        sel = "op_sel_hi:[1,0,1]" if i % 2 == 0 else "op_sel:[0,1,0] op_sel_hi:[1,1,1]"
        for k in range(4):
            a = 136 + 8 * h + 2 * k
            e(f"  v_pk_fma_f32 v[{a}:{a+1}], v[{160+2*k}:{161+2*k}], v[{pr}:{pr+1}], v[{a}:{a+1}] {sel}")
e("  v_lshrrev_b32 v3, 4, v0")
e("  v_lshlrev_b32 v3, 10, v3")
e("  v_and_b32 v5, 15, v0")
e("  v_lshlrev_b32 v5, 5, v5")
e("  v_add_u32 v3, v3, v5")
e("  ds_write_b128 v3, v[136:139]")
e("  ds_write_b128 v3, v[140:143] offset:16")
e("  ds_write_b128 v3, v[144:147] offset:512")
e("  ds_write_b128 v3, v[148:151] offset:528")
e("  v_mov_b32 v160, v152")
e("  v_mov_b32 v161, v155")
e("  v_mov_b32 v162, v153")
e("  v_mov_b32 v163, v156")
e("  v_lshlrev_b32 v5, 4, v2")
e("  v_cmp_eq_u32 vcc, 0, v1")
e("  s_and_saveexec_b64 s[36:37], vcc")
e("  ds_write_b128 v5, v[160:163] offset:32768")
e("  s_mov_b64 exec, s[36:37]")
e("  s_waitcnt lgkmcnt(0)")
e("  s_barrier")
e("  v_cmp_gt_u32 vcc, 256, v0")
e("  s_and_saveexec_b64 s[36:37], vcc")
e("  s_cbranch_execz K2_END")
e("  v_lshrrev_b32 v3, 7, v0")
e("  v_lshlrev_b32 v3, 3, v3")
for w in range(8):
    e(f"  ds_read_b64 v[{32+2*w}:{33+2*w}], v3 offset:{32768+16*w}")
e("  v_lshlrev_b32 v4, 2, v0")
for r in range(32):
    e(f"  ds_read_b32 v{64+r}, v4 offset:{1024*r}")
e("  s_waitcnt lgkmcnt(0)")
e("  v_max3_f32 v5, v32, v34, v36")
e("  v_max3_f32 v5, v5, v38, v40")
e("  v_max3_f32 v5, v5, v42, v44")
e("  v_max_f32 v5, v5, v46")
e("  v_mov_b32 v6, 0")
e("  v_mov_b32 v7, 0")
for w in range(8):
    e(f"  v_sub_f32 v8, v{32+2*w}, v5")
    e(f"  v_mul_f32 v8, v154, v8")
    e(f"  v_exp_f32 v8, v8")
    e(f"  v_add_f32 v9, v{64+4*w}, v{65+4*w}")
    e(f"  v_add_f32 v10, v{66+4*w}, v{67+4*w}")
    e(f"  v_add_f32 v9, v9, v10")
    e(f"  v_fmac_f32 v6, v8, v{33+2*w}")
    e(f"  v_fmac_f32 v7, v8, v9")
e("  v_lshrrev_b32 v3, 7, v0")
e("  v_lshlrev_b32 v3, 13, v3")
e("  v_and_b32 v4, 127, v0")
e("  v_lshlrev_b32 v8, 2, v4")
e("  v_add_u32 v3, v3, v8")
e("  s_lshl_b32 s34, s30, 14")
e("  s_lshl_b32 s35, s31, 9")
e("  s_add_u32 s34, s34, s35")
e(f"  s_add_u32 s34, s34, {WS_OP}")
e("  buffer_store_dword v7, v3, s[20:23], s34 offen")
e("  v_cmp_eq_u32 vcc, 0, v4")
e("  s_and_saveexec_b64 s[36:37], vcc")
e("  v_lshrrev_b32 v3, 7, v0")
e("  v_lshlrev_b32 v3, 7, v3")
e("  s_lshl_b32 s34, s30, 8")
e("  s_lshl_b32 s35, s31, 3")
e("  s_add_u32 s34, s34, s35")
e(f"  s_add_u32 s34, s34, {WS_ML}")
e("  v_mov_b32 v10, v5")
e("  v_mov_b32 v11, v6")
e("  buffer_store_dwordx2 v[10:11], v3, s[20:23], s34 offen")
e("K2_END:")
e("  s_endpgm")
kernel_desc("k2_attn_kernel", 168, 48)

def div72(vd, vs, vt):
    e(f"  v_mul_u32_u24 v{vd}, 911, v{vs}")
    e(f"  v_lshrrev_b32 v{vd}, 16, v{vd}")

kernel_begin("k3_wo_kernel")
e("  s_cmp_ge_u32 s2, 256")
e("  s_cbranch_scc1 K3_END")
e("  s_load_dwordx2 s[4:5], s[0:1], 32")
e("  s_load_dwordx2 s[8:9], s[0:1], 96")
e("  s_waitcnt lgkmcnt(0)")
srd(12, 4, 4096 * 1152)
srd(20, 8, WS_BYTES)
e("  s_lshr_b32 s30, s2, 3")
e("  s_and_b32 s31, s2, 7")
e("  s_lshl_b32 s32, s30, 7")
e("  s_lshl_b32 s33, s31, 4")
e("  s_add_u32 s32, s32, s33")
e("  s_mul_i32 s33, s32, 1152")
e("  s_add_u32 s34, s33, 9216")
e("  v_lshlrev_b32 v1, 4, v0")
e("  buffer_load_dwordx4 v[32:35], v1, s[12:15], s33 offen")
e("  buffer_load_dwordx4 v[36:39], v1, s[12:15], s34 offen")
div72(2, 0, 3)
e("  s_lshl_b32 s35, s30, 7")
e(f"  s_add_u32 s35, s35, {WS_ML}")
e("  v_mov_b32 v3, 0")
for k in range(8):
    e(f"  buffer_load_dwordx4 v[{40+4*k}:{43+4*k}], v3, s[20:23], s35 offen offset:{16*k}")
e("  s_lshl_b32 s35, s30, 13")
e("  s_lshl_b32 s36, s31, 6")
e("  s_add_u32 s35, s35, s36")
e(f"  s_add_u32 s35, s35, {WS_OP}")
e("  v_lshlrev_b32 v3, 2, v2")
e("  s_add_u32 s37, s35, 4096")
for i in range(2):
    for s in range(16):
        e(f"  buffer_load_dword v{72+16*i+s}, v3, s[20:23], s{35 if s < 8 else 37} offen offset:{512*(s%8)+32*i}")
e("  s_waitcnt vmcnt(32)")
e("  v_max3_f32 v5, v40, v42, v44")
for s in range(3, 15, 2):
    e(f"  v_max3_f32 v5, v5, v{40+2*s}, v{42+2*s}")
e("  v_max_f32 v5, v5, v70")
e(f"  v_mov_b32 v6, {CS}")
e("  v_mov_b32 v7, 0")
for s in range(16):
    e(f"  v_sub_f32 v{40+2*s}, v{40+2*s}, v5")
    e(f"  v_mul_f32 v{40+2*s}, v6, v{40+2*s}")
    e(f"  v_exp_f32 v{40+2*s}, v{40+2*s}")
    e("  s_nop 0")
    e(f"  v_fmac_f32 v7, v{40+2*s}, v{41+2*s}")
e("  v_rcp_f32 v7, v7")
e("  s_waitcnt vmcnt(0)")
for i in range(2):
    e(f"  v_mul_f32 v{8+i}, v40, v{72+16*i}")
    for s in range(1, 16):
        e(f"  v_fmac_f32 v{8+i}, v{40+2*s}, v{72+16*i+s}")
    e(f"  v_mul_f32 v{8+i}, v{8+i}, v7")
for k in range(8):
    e(f"  v_mov_b32 v{16+k}, 0")
for i in range(2):
    for k in range(4):
        d = 32 + 4 * i + k
        e(f"  v_lshlrev_b32 v6, 16, v{d}")
        e(f"  v_and_b32 v7, 0xffff0000, v{d}")
        e(f"  v_fmac_f32 v{16+2*k}, v6, v{8+i}")
        e(f"  v_fmac_f32 v{17+2*k}, v7, v{8+i}")
e("  v_mul_u32_u24 v3, 72, v2")
e("  v_sub_u32 v3, v0, v3")
e("  v_lshlrev_b32 v3, 5, v3")
e("  v_mul_u32_u24 v4, 2304, v2")
e("  v_add_u32 v3, v3, v4")
e("  ds_write_b128 v3, v[16:19]")
e("  ds_write_b128 v3, v[20:23] offset:16")
e("  s_waitcnt lgkmcnt(0)")
e("  s_barrier")
e("  v_lshlrev_b32 v3, 2, v0")
for r in range(8):
    e(f"  ds_read_b32 v{16+r}, v3 offset:{2304*r}")
e("  s_waitcnt lgkmcnt(0)")
for r in range(1, 8):
    e(f"  v_add_f32 v16, v16, v{16+r}")
e("  s_and_b32 s35, s2, 15")
e("  s_mul_i32 s35, s35, 2304")
e(f"  s_add_u32 s35, s35, {WS_REP1}")
e("  buffer_atomic_add_f32 v16, v3, s[20:23], s35 offen")
e("K3_END:")
e("  s_endpgm")
kernel_desc("k3_wo_kernel", 104, 48)

kernel_begin("k4_ffn_kernel")
e("  s_cmp_ge_u32 s2, 144")
e("  s_cbranch_scc1 K4_END")
e("  s_load_dwordx2 s[4:5], s[0:1], 0")
e("  s_load_dwordx2 s[6:7], s[0:1], 48")
e("  s_load_dwordx2 s[8:9], s[0:1], 96")
e("  s_load_dwordx2 s[10:11], s[0:1], 56")
e("  s_load_dwordx2 s[28:29], s[0:1], 64")
e("  s_waitcnt lgkmcnt(0)")
srd(12, 4, 1152)
srd(16, 6, 576 * 9216)
srd(20, 8, WS_BYTES)
srd(24, 10, 9216)
srd(36, 28, 4608 * 1152)
e("  s_and_b32 s30, s2, 7")
e("  s_mul_i32 s30, s30, 18")
e("  s_lshr_b32 s31, s2, 3")
e("  s_add_u32 s30, s30, s31")
e("  s_lshl_b32 s31, s30, 6")
e("  v_lshrrev_b32 v2, 2, v0")
e("  v_mul_u32_u24 v3, 9216, v2")
e("  v_and_b32 v4, 3, v0")
e("  v_lshlrev_b32 v4, 4, v4")
e("  v_add_u32 v3, v3, v4")
for i in range(4):
    e(f"  s_add_u32 s{40+i}, s31, {1327104*i}")
for i in range(4):
    e(f"  buffer_load_dwordx4 v[{32+4*i}:{35+4*i}], v3, s[16:19], s{40+i} offen")
e("  s_mul_i32 s32, s30, 36864")
e("  v_lshlrev_b32 v1, 4, v0")
for i in range(4):
    e(f"  s_add_u32 s{44+i}, s32, {9216*i}")
for i in range(4):
    e(f"  buffer_load_dwordx4 v[{48+4*i}:{51+4*i}], v1, s[36:39], s{44+i} offen")
e("  v_lshlrev_b32 v4, 1, v0")
e("  buffer_load_ushort v64, v4, s[12:15], 0 offen")
e("  v_lshlrev_b32 v4, 2, v0")
for r in range(16):
    e(f"  s_mov_b32 s{60+r}, {WS_REP1 + 2304*r}")
for r in range(16):
    e(f"  buffer_load_dword v{65+r}, v4, s[20:23], s{60+r} offen")
e("  s_waitcnt vmcnt(0)")
e("  v_lshlrev_b32 v64, 16, v64")
for r in range(16):
    e(f"  v_add_f32 v64, v64, v{65+r}")
e("  ds_write_b32 v4, v64 offset:20480")
e("  s_cmp_lg_u32 s2, 0")
e("  s_cbranch_scc1 K4_NOH")
e(f"  s_mov_b32 s33, {WS_H}")
e("  buffer_store_dword v64, v4, s[20:23], s33 offen")
e("K4_NOH:")
e("  s_waitcnt lgkmcnt(0)")
e("  s_barrier")
e("  v_and_b32 v5, 63, v0")
e("  v_lshlrev_b32 v5, 2, v5")
for j in range(9):
    e(f"  ds_read_b32 v{65+j}, v5 offset:{20480+256*j}")
e("  v_lshlrev_b32 v5, 2, v2")
for i in range(4):
    e(f"  ds_read_b32 v{76+i}, v5 offset:{20480+576*i}")
e("  s_waitcnt lgkmcnt(0)")
ln_stats(list(range(65, 74)), 576, 6, 7, 48, 8, 9)
for i in range(4):
    e(f"  v_sub_f32 v{76+i}, v{76+i}, v8")
    e(f"  v_mul_f32 v{76+i}, v{76+i}, v9")
for k in range(8):
    e(f"  v_mov_b32 v{80+k}, 0")
for i in range(4):
    for k in range(4):
        d = 32 + 4 * i + k
        e(f"  v_lshlrev_b32 v6, 16, v{d}")
        e(f"  v_and_b32 v7, 0xffff0000, v{d}")
        e(f"  v_fmac_f32 v{80+2*k}, v6, v{76+i}")
        e(f"  v_fmac_f32 v{81+2*k}, v7, v{76+i}")
e("  v_lshlrev_b32 v3, 7, v2")
e("  v_and_b32 v4, 3, v0")
e("  v_lshlrev_b32 v4, 5, v4")
e("  v_add_u32 v3, v3, v4")
e("  ds_write_b128 v3, v[80:83]")
e("  ds_write_b128 v3, v[84:87] offset:16")
e("  s_waitcnt lgkmcnt(0)")
e("  s_barrier")
e("  v_lshrrev_b32 v3, 5, v0")
e("  v_lshlrev_b32 v3, 10, v3")
e("  v_and_b32 v4, 31, v0")
e("  v_lshlrev_b32 v4, 2, v4")
e("  v_add_u32 v3, v3, v4")
for r in range(8):
    e(f"  ds_read_b32 v{80+r}, v3 offset:{128*r}")
e("  s_waitcnt lgkmcnt(0)")
for r in range(1, 8):
    e(f"  v_add_f32 v80, v80, v{80+r}")
e("  v_lshlrev_b32 v3, 2, v0")
e("  ds_write_b32 v3, v80 offset:18432")
e("  s_waitcnt lgkmcnt(0)")
e("  s_barrier")
for p in range(18):
    e(f"  ds_read_b32 v{80+p}, v4 offset:{18432+128*p}")
e("  v_lshlrev_b32 v5, 1, v0")
e("  v_and_b32 v5, 63, v5")
e("  buffer_load_ushort v100, v5, s[24:27], s31 offen")
e("  s_waitcnt vmcnt(0) lgkmcnt(0)")
for p in range(1, 18):
    e(f"  v_add_f32 v80, v80, v{80+p}")
e("  v_lshlrev_b32 v100, 16, v100")
e("  v_add_f32 v80, v80, v100")
e("  v_max_f32 v80, 0, v80")
e("  v_mul_f32 v80, v80, v80")
e("  s_barrier")
e("  ds_write_b32 v4, v80 offset:22800")
e("  s_waitcnt lgkmcnt(0)")
e("  s_barrier")
div72(2, 0, 3)
e("  v_lshlrev_b32 v5, 2, v2")
for i in range(4):
    e(f"  ds_read_b32 v{76+i}, v5 offset:{22800+32*i}")
for k in range(8):
    e(f"  v_mov_b32 v{80+k}, 0")
e("  s_waitcnt lgkmcnt(0)")
for i in range(4):
    for k in range(4):
        d = 48 + 4 * i + k
        e(f"  v_lshlrev_b32 v6, 16, v{d}")
        e(f"  v_and_b32 v7, 0xffff0000, v{d}")
        e(f"  v_fmac_f32 v{80+2*k}, v6, v{76+i}")
        e(f"  v_fmac_f32 v{81+2*k}, v7, v{76+i}")
e("  v_mul_u32_u24 v3, 72, v2")
e("  v_sub_u32 v3, v0, v3")
e("  v_lshlrev_b32 v3, 5, v3")
e("  v_mul_u32_u24 v4, 2304, v2")
e("  v_add_u32 v3, v3, v4")
e("  ds_write_b128 v3, v[80:83]")
e("  ds_write_b128 v3, v[84:87] offset:16")
e("  s_waitcnt lgkmcnt(0)")
e("  s_barrier")
e("  v_lshlrev_b32 v3, 2, v0")
for r in range(8):
    e(f"  ds_read_b32 v{16+r}, v3 offset:{2304*r}")
e("  s_waitcnt lgkmcnt(0)")
for r in range(1, 8):
    e(f"  v_add_f32 v16, v16, v{16+r}")
e("  s_and_b32 s35, s2, 15")
e("  s_mul_i32 s35, s35, 2304")
e(f"  s_add_u32 s35, s35, {WS_REP2}")
e("  buffer_atomic_add_f32 v16, v3, s[20:23], s35 offen")
e("K4_END:")
e("  s_endpgm")
kernel_desc("k4_ffn_kernel", 104, 80)

kernel_begin("k5_fin_kernel")
e("  s_cmp_ge_u32 s2, 1")
e("  s_cbranch_scc1 K5_END")
e("  s_load_dwordx2 s[4:5], s[0:1], 72")
e("  s_load_dwordx2 s[6:7], s[0:1], 80")
e("  s_load_dwordx2 s[8:9], s[0:1], 96")
e("  s_waitcnt lgkmcnt(0)")
srd(12, 4, 1152)
srd(16, 6, 1152)
srd(20, 8, WS_BYTES)
e("  v_lshlrev_b32 v1, 1, v0")
e("  v_lshlrev_b32 v2, 2, v0")
e("  buffer_load_ushort v3, v1, s[12:15], 0 offen")
e(f"  s_mov_b32 s33, {WS_H}")
e("  buffer_load_dword v4, v2, s[20:23], s33 offen")
for r in range(16):
    e(f"  s_mov_b32 s{60+r}, {WS_REP2 + 2304*r}")
for r in range(16):
    e(f"  buffer_load_dword v{5+r}, v2, s[20:23], s{60+r} offen")
e("  s_waitcnt vmcnt(0)")
e("  v_lshlrev_b32 v3, 16, v3")
e("  v_add_f32 v3, v3, v4")
for r in range(16):
    e(f"  v_add_f32 v3, v3, v{5+r}")
e("  v_cvt_pk_bf16_f32 v3, v3, v3")
e("  buffer_store_short v3, v1, s[16:19], 0 offen")
e("K5_END:")
e("  s_endpgm")
kernel_desc("k5_fin_kernel", 24, 80)

open(f"cdna_kernels/{NAME}.s", "w").write("\n".join(L) + "\n")
print("ok", len(L))
```

```python
NAME = "sequential_preLN__sliding_block_cached__dense_activation_squared_relu__decode"
HDR = open(f"cdna_kernels/{NAME}.s.ref").read().split("; Override launch geometry")[0]

L = []
NT = "sc1 nt"
def e(s=""):
    L.append(s)

WS_Q = 0
WS_OP = 65536
WS_ML = 524288
WS_REP1 = 1048576
WS_REP2 = WS_REP1 + 36864
WS_H = WS_REP1 + 73728
WS_BYTES = 1073741824

C_SCALE = 0x3e0293a5
import struct, math
def f2h(x): return "0x%08x" % struct.unpack("<I", struct.pack("<f", x))[0]
CS = f2h(128 ** -0.5 * math.log2(math.e))

def srd(dst, ptr, nbytes):
    e(f"  s_mov_b32 s{dst}, s{ptr}")
    e(f"  s_and_b32 s{dst+1}, s{ptr+1}, 0xffff")
    e(f"  s_mov_b32 s{dst+2}, {nbytes}")
    e(f"  s_mov_b32 s{dst+3}, 0x00020000")

def wave_sum(v, t, s):
    e("  s_nop 1")
    e(f"  v_add_f32_dpp v{t}, v{v}, v{v} quad_perm:[1,0,3,2] row_mask:0xf bank_mask:0xf")
    e("  s_nop 1")
    e(f"  v_add_f32_dpp v{v}, v{t}, v{t} quad_perm:[2,3,0,1] row_mask:0xf bank_mask:0xf")
    e("  s_nop 1")
    e(f"  v_add_f32_dpp v{t}, v{v}, v{v} row_half_mirror row_mask:0xf bank_mask:0xf")
    e("  s_nop 1")
    e(f"  v_add_f32_dpp v{v}, v{t}, v{t} row_mirror row_mask:0xf bank_mask:0xf")
    e("  s_nop 1")
    for k in range(4):
        e(f"  v_readlane_b32 s{s+k}, v{v}, {16*k}")
    e("  s_nop 1")
    e(f"  v_mov_b32 v{v}, s{s}")
    for k in range(1, 4):
        e(f"  v_add_f32 v{v}, s{s+k}, v{v}")

def kernel_begin(name):
    e(".text")
    e(f".globl {name}")
    e(".p2align 8")
    e(f".type {name},@function")
    e(f"{name}:")

def kernel_desc(name, vgpr, sgpr):
    acc = (vgpr + 3) // 4 * 4
    e('.section .rodata,"a"')
    e(".p2align 6")
    e(f".amdhsa_kernel {name}")
    e(f"  .amdhsa_next_free_vgpr {vgpr}")
    e(f"  .amdhsa_next_free_sgpr {sgpr}")
    e(f"  .amdhsa_accum_offset {acc}")
    e("  .amdhsa_group_segment_fixed_size 0")
    e("  .amdhsa_kernarg_size 104")
    e("  .amdhsa_user_sgpr_count 2")
    e("  .amdhsa_user_sgpr_kernarg_segment_ptr 1")
    e("  .amdhsa_system_sgpr_workgroup_id_x 1")
    e(".end_amdhsa_kernel")

def ln_stats(vals, n, vsum, vt, s, vmean, vrstd):
    e(f"  v_add_f32 v{vsum}, v{vals[0]}, v{vals[1]}")
    for v in vals[2:]:
        e(f"  v_add_f32 v{vsum}, v{vsum}, v{v}")
    wave_sum(vsum, vt, s)
    e(f"  v_mul_f32 v{vmean}, {f2h(1.0/n)}, v{vsum}")
    e(f"  v_sub_f32 v{vt}, v{vals[0]}, v{vmean}")
    e(f"  v_mul_f32 v{vsum}, v{vt}, v{vt}")
    for v in vals[1:]:
        e(f"  v_sub_f32 v{vt}, v{v}, v{vmean}")
        e(f"  v_fmac_f32 v{vsum}, v{vt}, v{vt}")
    wave_sum(vsum, vt, s)
    e(f"  v_mov_b32 v{vt}, {f2h(1e-5)}")
    e(f"  v_fmac_f32 v{vt}, {f2h(1.0/n)}, v{vsum}")
    e(f"  v_rsq_f32 v{vrstd}, v{vt}")
    e("  s_nop 1")

e(HDR.rstrip())
e("; @launch kernel=k1_qproj_kernel grid=(64,1,1) block=(512,1,1) lds=16384")
e("; @launch kernel=k2_attn_kernel grid=(256,1,1) block=(512,1,1) lds=33024")
e("; @launch kernel=k3_wo_kernel grid=(256,1,1) block=(576,1,1) lds=18432")
e("; @launch kernel=k4_ffn_kernel grid=(144,1,1) block=(576,1,1) lds=24576")
e("; @launch kernel=k5_fin_kernel grid=(1,1,1) block=(576,1,1) lds=0")
e('.amdgcn_target "amdgcn-amd-amdhsa--gfx950"')

kernel_begin("k1_qproj_kernel")
e("  s_cmp_ge_u32 s2, 64")
e("  s_cbranch_scc1 K1_END")
e("  s_load_dwordx2 s[4:5], s[0:1], 0")
e("  s_load_dwordx2 s[6:7], s[0:1], 24")
e("  s_load_dwordx2 s[8:9], s[0:1], 96")
e("  s_waitcnt lgkmcnt(0)")
srd(12, 4, 1152)
srd(16, 6, 576 * 8192)
srd(20, 8, WS_BYTES)
e("  v_and_b32 v1, 63, v0")
e("  v_lshlrev_b32 v2, 1, v1")
for j in range(9):
    e(f"  buffer_load_ushort v{10+j}, v2, s[12:15], 0 offen offset:{128*j}")
e("  v_lshrrev_b32 v3, 3, v0")
e("  v_lshlrev_b32 v5, 1, v3")
for i in range(9):
    e(f"  buffer_load_ushort v{20+i}, v5, s[12:15], 0 offen offset:{128*i}")
e("  v_lshlrev_b32 v4, 13, v3")
e("  v_and_b32 v5, 7, v0")
e("  v_lshlrev_b32 v5, 4, v5")
e("  v_add_u32 v4, v4, v5")
e("  s_lshl_b32 s24, s2, 7")
for i in range(9):
    e(f"  s_add_u32 s{25+i}, s24, {524288*i}")
for i in range(9):
    e(f"  buffer_load_dwordx4 v[{32+4*i}:{35+4*i}], v4, s[16:19], s{25+i} offen {NT}")
e("  s_waitcnt vmcnt(9)")
for j in range(9):
    e(f"  v_lshlrev_b32 v{10+j}, 16, v{10+j}")
    e(f"  v_lshlrev_b32 v{20+j}, 16, v{20+j}")
ln_stats(list(range(10, 19)), 576, 6, 7, 40, 8, 9)
for i in range(9):
    e(f"  v_sub_f32 v{20+i}, v{20+i}, v8")
    e(f"  v_mul_f32 v{20+i}, v{20+i}, v9")
for k in range(8):
    e(f"  v_mov_b32 v{80+k}, 0")
for i in range(9):
    e(f"  s_waitcnt vmcnt({8-i})")
    for k in range(4):
        d = 32 + 4 * i + k
        e(f"  v_lshlrev_b32 v6, 16, v{d}")
        e(f"  v_and_b32 v7, 0xffff0000, v{d}")
        e(f"  v_fmac_f32 v{80+2*k}, v6, v{20+i}")
        e(f"  v_fmac_f32 v{81+2*k}, v7, v{20+i}")
e("  v_lshlrev_b32 v4, 8, v3")
e("  v_and_b32 v5, 7, v0")
e("  v_lshlrev_b32 v5, 5, v5")
e("  v_add_u32 v4, v4, v5")
e("  ds_write_b128 v4, v[80:83]")
e("  ds_write_b128 v4, v[84:87] offset:16")
e("  s_waitcnt lgkmcnt(0)")
e("  s_barrier")
e("  v_cmp_gt_u32 vcc, 64, v0")
e("  s_and_saveexec_b64 s[36:37], vcc")
e("  s_cbranch_execz K1_END")
e("  v_lshlrev_b32 v4, 2, v0")
for r in range(64):
    e(f"  ds_read_b32 v{10 + (r % 16)}, v4 offset:{256*r}")
    if r % 16 == 15:
        e("  s_waitcnt lgkmcnt(0)")
        for k in range(16):
            if r == 15 and k == 0:
                e("  v_mov_b32 v6, v10")
            else:
                e(f"  v_add_f32 v6, v6, v{10+k}")
e("  s_lshl_b32 s24, s2, 8")
e(f"  buffer_store_dword v6, v4, s[20:23], s24 offen offset:{WS_Q}")
e("K1_END:")
e("  s_endpgm")
kernel_desc("k1_qproj_kernel", 96, 48)

kernel_begin("k2_attn_kernel")
e("  s_cmp_ge_u32 s2, 256")
e("  s_cbranch_scc1 K2_END")
e("  s_load_dwordx2 s[4:5], s[0:1], 8")
e("  s_load_dwordx2 s[6:7], s[0:1], 16")
e("  s_load_dwordx2 s[8:9], s[0:1], 96")
e("  s_waitcnt lgkmcnt(0)")
srd(12, 4, 268435456)
srd(16, 6, 268435456)
srd(20, 8, WS_BYTES)
e("  s_and_b32 s30, s2, 7")
e("  s_lshl_b32 s30, s30, 1")
e("  s_lshr_b32 s31, s2, 3")
e("  s_and_b32 s31, s31, 1")
e("  s_or_b32 s30, s30, s31")
e("  s_lshr_b32 s31, s2, 4")
e("  s_lshl_b32 s32, s30, 24")
e("  s_lshl_b32 s33, s31, 16")
e("  s_add_u32 s32, s32, s33")
e("  s_add_u32 s32, s32, 15728640")
e("  s_add_u32 s33, s32, 4096")
e("  s_cmp_ge_u32 s2, 9")
e("  s_cbranch_scc1 K2_NOZ")
e("  v_mov_b32 v4, 0")
e("  v_mov_b32 v5, 0")
e("  v_mov_b32 v6, 0")
e("  v_mov_b32 v7, 0")
e("  v_lshlrev_b32 v1, 4, v0")
e("  s_lshl_b32 s34, s2, 13")
e(f"  s_add_u32 s34, s34, {WS_REP1}")
e("  buffer_store_dwordx4 v[4:7], v1, s[20:23], s34 offen")
e("K2_NOZ:")
e("  v_and_b32 v1, 63, v0")
e("  v_lshrrev_b32 v2, 6, v0")
e("  v_and_b32 v3, 15, v0")
e("  v_lshlrev_b32 v3, 5, v3")
e("  s_lshl_b32 s34, s30, 10")
for k in range(4):
    e(f"  buffer_load_dwordx4 v[{96+4*k}:{99+4*k}], v3, s[20:23], s34 offen offset:{WS_Q + (k//2)*512 + (k%2)*16}")
e("  v_lshlrev_b32 v4, 13, v2")
e("  v_lshlrev_b32 v5, 4, v1")
e("  v_add_u32 v4, v4, v5")
for i in range(8):
    e(f"  buffer_load_dwordx4 v[{32+4*i}:{35+4*i}], v4, s[12:15], s{32 + i//4} offen offset:{(i%4)*1024} {NT}")
for i in range(8):
    e(f"  buffer_load_dwordx4 v[{64+4*i}:{67+4*i}], v4, s[16:19], s{32 + i//4} offen offset:{(i%4)*1024} {NT}")
e("  s_waitcnt vmcnt(16)")
for k in range(8):
    e(f"  v_cvt_pk_bf16_f32 v{112+k}, v{96+2*k}, v{97+2*k}")
e("  s_nop 1")
for i in range(8):
    e(f"  s_waitcnt vmcnt({15-i})")
    for k in range(4):
        for h in range(2):
            src2 = "0" if k == 0 else f"v{120+8*h+i}"
            e(f"  v_dot2_f32_bf16 v{120+8*h+i}, v{32+4*i+k}, v{112+4*h+k}, {src2}")
e("  s_nop 3")
steps = ["quad_perm:[1,0,3,2]", "quad_perm:[2,3,0,1]", "row_half_mirror", "row_mirror"]
for st in steps:
    for r in range(16):
        e(f"  v_add_f32_dpp v{120+r}, v{120+r}, v{120+r} {st} row_mask:0xf bank_mask:0xf")
e("  s_nop 1")
for h in range(2):
    b = 120 + 8 * h
    e(f"  v_max3_f32 v{152+h}, v{b}, v{b+1}, v{b+2}")
    e(f"  v_max3_f32 v{152+h}, v{152+h}, v{b+3}, v{b+4}")
    e(f"  v_max3_f32 v{152+h}, v{152+h}, v{b+5}, v{b+6}")
    e(f"  v_max_f32 v{152+h}, v{152+h}, v{b+7}")
e("  s_nop 1")
for h in range(2):
    for k in range(4):
        e(f"  v_readlane_b32 s{40+4*h+k}, v{152+h}, {16*k}")
e("  s_nop 1")
for h in range(2):
    e(f"  v_mov_b32 v{152+h}, s{40+4*h}")
    for k in range(1, 4):
        e(f"  v_max_f32 v{152+h}, s{40+4*h+k}, v{152+h}")
e(f"  v_mov_b32 v154, {CS}")
for h in range(2):
    for i in range(8):
        r = 120 + 8 * h + i
        e(f"  v_sub_f32 v{r}, v{r}, v{152+h}")
        e(f"  v_mul_f32 v{r}, v154, v{r}")
        e(f"  v_exp_f32 v{r}, v{r}")
e("  s_nop 1")
for h in range(2):
    b = 120 + 8 * h
    e(f"  v_add_f32 v{155+h}, v{b}, v{b+1}")
    for i in range(2, 8):
        e(f"  v_add_f32 v{155+h}, v{155+h}, v{b+i}")
e("  s_nop 1")
for h in range(2):
    for k in range(4):
        e(f"  v_readlane_b32 s{40+4*h+k}, v{155+h}, {16*k}")
e("  s_nop 1")
for h in range(2):
    e(f"  v_mov_b32 v{155+h}, s{40+4*h}")
    for k in range(1, 4):
        e(f"  v_add_f32 v{155+h}, s{40+4*h+k}, v{155+h}")
for k in range(16):
    e(f"  v_mov_b32 v{136+k}, 0")
for i in range(8):
    e(f"  s_waitcnt vmcnt({7-i})")
    for k in range(4):
        d = 64 + 4 * i + k
        e(f"  v_lshlrev_b32 v{160+2*k}, 16, v{d}")
        e(f"  v_and_b32 v{161+2*k}, 0xffff0000, v{d}")
    for h in range(2):
        pr = 120 + 8 * h + (i & ~1)
        sel = "op_sel_hi:[1,0,1]" if i % 2 == 0 else "op_sel:[0,1,0] op_sel_hi:[1,1,1]"
        for k in range(4):
            a = 136 + 8 * h + 2 * k
            e(f"  v_pk_fma_f32 v[{a}:{a+1}], v[{160+2*k}:{161+2*k}], v[{pr}:{pr+1}], v[{a}:{a+1}] {sel}")
e("  v_lshrrev_b32 v3, 4, v0")
e("  v_lshlrev_b32 v3, 10, v3")
e("  v_and_b32 v5, 15, v0")
e("  v_lshlrev_b32 v5, 5, v5")
e("  v_add_u32 v3, v3, v5")
e("  ds_write_b128 v3, v[136:139]")
e("  ds_write_b128 v3, v[140:143] offset:16")
e("  ds_write_b128 v3, v[144:147] offset:512")
e("  ds_write_b128 v3, v[148:151] offset:528")
e("  v_mov_b32 v160, v152")
e("  v_mov_b32 v161, v155")
e("  v_mov_b32 v162, v153")
e("  v_mov_b32 v163, v156")
e("  v_lshlrev_b32 v5, 4, v2")
e("  v_cmp_eq_u32 vcc, 0, v1")
e("  s_and_saveexec_b64 s[36:37], vcc")
e("  ds_write_b128 v5, v[160:163] offset:32768")
e("  s_mov_b64 exec, s[36:37]")
e("  s_waitcnt lgkmcnt(0)")
e("  s_barrier")
e("  v_cmp_gt_u32 vcc, 256, v0")
e("  s_and_saveexec_b64 s[36:37], vcc")
e("  s_cbranch_execz K2_END")
e("  v_lshrrev_b32 v3, 7, v0")
e("  v_lshlrev_b32 v3, 3, v3")
for w in range(8):
    e(f"  ds_read_b64 v[{32+2*w}:{33+2*w}], v3 offset:{32768+16*w}")
e("  v_lshlrev_b32 v4, 2, v0")
for r in range(32):
    e(f"  ds_read_b32 v{64+r}, v4 offset:{1024*r}")
e("  s_waitcnt lgkmcnt(0)")
e("  v_max3_f32 v5, v32, v34, v36")
e("  v_max3_f32 v5, v5, v38, v40")
e("  v_max3_f32 v5, v5, v42, v44")
e("  v_max_f32 v5, v5, v46")
e("  v_mov_b32 v6, 0")
e("  v_mov_b32 v7, 0")
for w in range(8):
    e(f"  v_sub_f32 v8, v{32+2*w}, v5")
    e(f"  v_mul_f32 v8, v154, v8")
    e(f"  v_exp_f32 v8, v8")
    e(f"  v_add_f32 v9, v{64+4*w}, v{65+4*w}")
    e(f"  v_add_f32 v10, v{66+4*w}, v{67+4*w}")
    e(f"  v_add_f32 v9, v9, v10")
    e(f"  v_fmac_f32 v6, v8, v{33+2*w}")
    e(f"  v_fmac_f32 v7, v8, v9")
e("  v_lshrrev_b32 v3, 7, v0")
e("  v_lshlrev_b32 v3, 13, v3")
e("  v_and_b32 v4, 127, v0")
e("  v_lshlrev_b32 v8, 2, v4")
e("  v_add_u32 v3, v3, v8")
e("  s_lshl_b32 s34, s30, 14")
e("  s_lshl_b32 s35, s31, 9")
e("  s_add_u32 s34, s34, s35")
e(f"  s_add_u32 s34, s34, {WS_OP}")
e("  buffer_store_dword v7, v3, s[20:23], s34 offen")
e("  v_cmp_eq_u32 vcc, 0, v4")
e("  s_and_saveexec_b64 s[36:37], vcc")
e("  v_lshrrev_b32 v3, 7, v0")
e("  v_lshlrev_b32 v3, 7, v3")
e("  s_lshl_b32 s34, s30, 8")
e("  s_lshl_b32 s35, s31, 3")
e("  s_add_u32 s34, s34, s35")
e(f"  s_add_u32 s34, s34, {WS_ML}")
e("  v_mov_b32 v10, v5")
e("  v_mov_b32 v11, v6")
e("  buffer_store_dwordx2 v[10:11], v3, s[20:23], s34 offen")
e("K2_END:")
e("  s_endpgm")
kernel_desc("k2_attn_kernel", 168, 48)

def div72(vd, vs, vt):
    e(f"  v_mul_u32_u24 v{vd}, 911, v{vs}")
    e(f"  v_lshrrev_b32 v{vd}, 16, v{vd}")

kernel_begin("k3_wo_kernel")
e("  s_cmp_ge_u32 s2, 256")
e("  s_cbranch_scc1 K3_END")
e("  s_load_dwordx2 s[4:5], s[0:1], 32")
e("  s_load_dwordx2 s[8:9], s[0:1], 96")
e("  s_waitcnt lgkmcnt(0)")
srd(12, 4, 4096 * 1152)
srd(20, 8, WS_BYTES)
e("  s_lshr_b32 s30, s2, 3")
e("  s_and_b32 s31, s2, 7")
e("  s_lshl_b32 s32, s30, 7")
e("  s_lshl_b32 s33, s31, 4")
e("  s_add_u32 s32, s32, s33")
e("  s_mul_i32 s33, s32, 1152")
e("  s_add_u32 s34, s33, 9216")
e("  v_lshlrev_b32 v1, 4, v0")
e(f"  buffer_load_dwordx4 v[32:35], v1, s[12:15], s33 offen {NT}")
e(f"  buffer_load_dwordx4 v[36:39], v1, s[12:15], s34 offen {NT}")
div72(2, 0, 3)
e("  s_lshl_b32 s35, s30, 7")
e(f"  s_add_u32 s35, s35, {WS_ML}")
e("  v_mov_b32 v3, 0")
for k in range(8):
    e(f"  buffer_load_dwordx4 v[{40+4*k}:{43+4*k}], v3, s[20:23], s35 offen offset:{16*k}")
e("  s_lshl_b32 s35, s30, 13")
e("  s_lshl_b32 s36, s31, 6")
e("  s_add_u32 s35, s35, s36")
e(f"  s_add_u32 s35, s35, {WS_OP}")
e("  v_lshlrev_b32 v3, 2, v2")
e("  s_add_u32 s37, s35, 4096")
for i in range(2):
    for s in range(16):
        e(f"  buffer_load_dword v{72+16*i+s}, v3, s[20:23], s{35 if s < 8 else 37} offen offset:{512*(s%8)+32*i}")
e("  s_waitcnt vmcnt(32)")
e("  v_max3_f32 v5, v40, v42, v44")
for s in range(3, 15, 2):
    e(f"  v_max3_f32 v5, v5, v{40+2*s}, v{42+2*s}")
e("  v_max_f32 v5, v5, v70")
e(f"  v_mov_b32 v6, {CS}")
e("  v_mov_b32 v7, 0")
for s in range(16):
    e(f"  v_sub_f32 v{40+2*s}, v{40+2*s}, v5")
    e(f"  v_mul_f32 v{40+2*s}, v6, v{40+2*s}")
    e(f"  v_exp_f32 v{40+2*s}, v{40+2*s}")
    e("  s_nop 0")
    e(f"  v_fmac_f32 v7, v{40+2*s}, v{41+2*s}")
e("  v_rcp_f32 v7, v7")
e("  s_waitcnt vmcnt(0)")
for i in range(2):
    e(f"  v_mul_f32 v{8+i}, v40, v{72+16*i}")
    for s in range(1, 16):
        e(f"  v_fmac_f32 v{8+i}, v{40+2*s}, v{72+16*i+s}")
    e(f"  v_mul_f32 v{8+i}, v{8+i}, v7")
for k in range(8):
    e(f"  v_mov_b32 v{16+k}, 0")
for i in range(2):
    for k in range(4):
        d = 32 + 4 * i + k
        e(f"  v_lshlrev_b32 v6, 16, v{d}")
        e(f"  v_and_b32 v7, 0xffff0000, v{d}")
        e(f"  v_fmac_f32 v{16+2*k}, v6, v{8+i}")
        e(f"  v_fmac_f32 v{17+2*k}, v7, v{8+i}")
e("  v_mul_u32_u24 v3, 72, v2")
e("  v_sub_u32 v3, v0, v3")
e("  v_lshlrev_b32 v3, 5, v3")
e("  v_mul_u32_u24 v4, 2304, v2")
e("  v_add_u32 v3, v3, v4")
e("  ds_write_b128 v3, v[16:19]")
e("  ds_write_b128 v3, v[20:23] offset:16")
e("  s_waitcnt lgkmcnt(0)")
e("  s_barrier")
e("  v_lshlrev_b32 v3, 2, v0")
for r in range(8):
    e(f"  ds_read_b32 v{16+r}, v3 offset:{2304*r}")
e("  s_waitcnt lgkmcnt(0)")
for r in range(1, 8):
    e(f"  v_add_f32 v16, v16, v{16+r}")
e("  s_and_b32 s35, s2, 15")
e("  s_mul_i32 s35, s35, 2304")
e(f"  s_add_u32 s35, s35, {WS_REP1}")
e("  buffer_atomic_add_f32 v16, v3, s[20:23], s35 offen")
e("K3_END:")
e("  s_endpgm")
kernel_desc("k3_wo_kernel", 104, 48)

kernel_begin("k4_ffn_kernel")
e("  s_cmp_ge_u32 s2, 144")
e("  s_cbranch_scc1 K4_END")
e("  s_load_dwordx2 s[4:5], s[0:1], 0")
e("  s_load_dwordx2 s[6:7], s[0:1], 48")
e("  s_load_dwordx2 s[8:9], s[0:1], 96")
e("  s_load_dwordx2 s[10:11], s[0:1], 56")
e("  s_load_dwordx2 s[28:29], s[0:1], 64")
e("  s_waitcnt lgkmcnt(0)")
srd(12, 4, 1152)
srd(16, 6, 576 * 9216)
srd(20, 8, WS_BYTES)
srd(24, 10, 9216)
srd(36, 28, 4608 * 1152)
e("  s_and_b32 s30, s2, 7")
e("  s_mul_i32 s30, s30, 18")
e("  s_lshr_b32 s31, s2, 3")
e("  s_add_u32 s30, s30, s31")
e("  s_lshl_b32 s31, s30, 6")
e("  v_lshrrev_b32 v2, 2, v0")
e("  v_mul_u32_u24 v3, 9216, v2")
e("  v_and_b32 v4, 3, v0")
e("  v_lshlrev_b32 v4, 4, v4")
e("  v_add_u32 v3, v3, v4")
for i in range(4):
    e(f"  s_add_u32 s{40+i}, s31, {1327104*i}")
for i in range(4):
    e(f"  buffer_load_dwordx4 v[{32+4*i}:{35+4*i}], v3, s[16:19], s{40+i} offen {NT}")
e("  s_mul_i32 s32, s30, 36864")
e("  v_lshlrev_b32 v1, 4, v0")
for i in range(4):
    e(f"  s_add_u32 s{44+i}, s32, {9216*i}")
for i in range(4):
    e(f"  buffer_load_dwordx4 v[{48+4*i}:{51+4*i}], v1, s[36:39], s{44+i} offen {NT}")
e("  v_lshlrev_b32 v4, 1, v0")
e("  buffer_load_ushort v64, v4, s[12:15], 0 offen")
e("  v_lshlrev_b32 v4, 2, v0")
for r in range(16):
    e(f"  s_mov_b32 s{60+r}, {WS_REP1 + 2304*r}")
for r in range(16):
    e(f"  buffer_load_dword v{65+r}, v4, s[20:23], s{60+r} offen")
e("  s_waitcnt vmcnt(0)")
e("  v_lshlrev_b32 v64, 16, v64")
for r in range(16):
    e(f"  v_add_f32 v64, v64, v{65+r}")
e("  ds_write_b32 v4, v64 offset:20480")
e("  s_cmp_lg_u32 s2, 0")
e("  s_cbranch_scc1 K4_NOH")
e(f"  s_mov_b32 s33, {WS_H}")
e("  buffer_store_dword v64, v4, s[20:23], s33 offen")
e("K4_NOH:")
e("  s_waitcnt lgkmcnt(0)")
e("  s_barrier")
e("  v_and_b32 v5, 63, v0")
e("  v_lshlrev_b32 v5, 2, v5")
for j in range(9):
    e(f"  ds_read_b32 v{65+j}, v5 offset:{20480+256*j}")
e("  v_lshlrev_b32 v5, 2, v2")
for i in range(4):
    e(f"  ds_read_b32 v{76+i}, v5 offset:{20480+576*i}")
e("  s_waitcnt lgkmcnt(0)")
ln_stats(list(range(65, 74)), 576, 6, 7, 48, 8, 9)
for i in range(4):
    e(f"  v_sub_f32 v{76+i}, v{76+i}, v8")
    e(f"  v_mul_f32 v{76+i}, v{76+i}, v9")
for k in range(8):
    e(f"  v_mov_b32 v{80+k}, 0")
for i in range(4):
    for k in range(4):
        d = 32 + 4 * i + k
        e(f"  v_lshlrev_b32 v6, 16, v{d}")
        e(f"  v_and_b32 v7, 0xffff0000, v{d}")
        e(f"  v_fmac_f32 v{80+2*k}, v6, v{76+i}")
        e(f"  v_fmac_f32 v{81+2*k}, v7, v{76+i}")
e("  v_lshlrev_b32 v3, 7, v2")
e("  v_and_b32 v4, 3, v0")
e("  v_lshlrev_b32 v4, 5, v4")
e("  v_add_u32 v3, v3, v4")
e("  ds_write_b128 v3, v[80:83]")
e("  ds_write_b128 v3, v[84:87] offset:16")
e("  s_waitcnt lgkmcnt(0)")
e("  s_barrier")
e("  v_lshrrev_b32 v3, 5, v0")
e("  v_lshlrev_b32 v3, 10, v3")
e("  v_and_b32 v4, 31, v0")
e("  v_lshlrev_b32 v4, 2, v4")
e("  v_add_u32 v3, v3, v4")
for r in range(8):
    e(f"  ds_read_b32 v{80+r}, v3 offset:{128*r}")
e("  s_waitcnt lgkmcnt(0)")
for r in range(1, 8):
    e(f"  v_add_f32 v80, v80, v{80+r}")
e("  v_lshlrev_b32 v3, 2, v0")
e("  ds_write_b32 v3, v80 offset:18432")
e("  s_waitcnt lgkmcnt(0)")
e("  s_barrier")
for p in range(18):
    e(f"  ds_read_b32 v{80+p}, v4 offset:{18432+128*p}")
e("  v_lshlrev_b32 v5, 1, v0")
e("  v_and_b32 v5, 63, v5")
e("  buffer_load_ushort v100, v5, s[24:27], s31 offen")
e("  s_waitcnt vmcnt(0) lgkmcnt(0)")
for p in range(1, 18):
    e(f"  v_add_f32 v80, v80, v{80+p}")
e("  v_lshlrev_b32 v100, 16, v100")
e("  v_add_f32 v80, v80, v100")
e("  v_max_f32 v80, 0, v80")
e("  v_mul_f32 v80, v80, v80")
e("  s_barrier")
e("  ds_write_b32 v4, v80 offset:22800")
e("  s_waitcnt lgkmcnt(0)")
e("  s_barrier")
div72(2, 0, 3)
e("  v_lshlrev_b32 v5, 2, v2")
for i in range(4):
    e(f"  ds_read_b32 v{76+i}, v5 offset:{22800+32*i}")
for k in range(8):
    e(f"  v_mov_b32 v{80+k}, 0")
e("  s_waitcnt lgkmcnt(0)")
for i in range(4):
    for k in range(4):
        d = 48 + 4 * i + k
        e(f"  v_lshlrev_b32 v6, 16, v{d}")
        e(f"  v_and_b32 v7, 0xffff0000, v{d}")
        e(f"  v_fmac_f32 v{80+2*k}, v6, v{76+i}")
        e(f"  v_fmac_f32 v{81+2*k}, v7, v{76+i}")
e("  v_mul_u32_u24 v3, 72, v2")
e("  v_sub_u32 v3, v0, v3")
e("  v_lshlrev_b32 v3, 5, v3")
e("  v_mul_u32_u24 v4, 2304, v2")
e("  v_add_u32 v3, v3, v4")
e("  ds_write_b128 v3, v[80:83]")
e("  ds_write_b128 v3, v[84:87] offset:16")
e("  s_waitcnt lgkmcnt(0)")
e("  s_barrier")
e("  v_lshlrev_b32 v3, 2, v0")
for r in range(8):
    e(f"  ds_read_b32 v{16+r}, v3 offset:{2304*r}")
e("  s_waitcnt lgkmcnt(0)")
for r in range(1, 8):
    e(f"  v_add_f32 v16, v16, v{16+r}")
e("  s_and_b32 s35, s2, 15")
e("  s_mul_i32 s35, s35, 2304")
e(f"  s_add_u32 s35, s35, {WS_REP2}")
e("  buffer_atomic_add_f32 v16, v3, s[20:23], s35 offen")
e("K4_END:")
e("  s_endpgm")
kernel_desc("k4_ffn_kernel", 104, 80)

kernel_begin("k5_fin_kernel")
e("  s_cmp_ge_u32 s2, 1")
e("  s_cbranch_scc1 K5_END")
e("  s_load_dwordx2 s[4:5], s[0:1], 72")
e("  s_load_dwordx2 s[6:7], s[0:1], 80")
e("  s_load_dwordx2 s[8:9], s[0:1], 96")
e("  s_waitcnt lgkmcnt(0)")
srd(12, 4, 1152)
srd(16, 6, 1152)
srd(20, 8, WS_BYTES)
e("  v_lshlrev_b32 v1, 1, v0")
e("  v_lshlrev_b32 v2, 2, v0")
e("  buffer_load_ushort v3, v1, s[12:15], 0 offen")
e(f"  s_mov_b32 s33, {WS_H}")
e("  buffer_load_dword v4, v2, s[20:23], s33 offen")
for r in range(16):
    e(f"  s_mov_b32 s{60+r}, {WS_REP2 + 2304*r}")
for r in range(16):
    e(f"  buffer_load_dword v{5+r}, v2, s[20:23], s{60+r} offen")
e("  s_waitcnt vmcnt(0)")
e("  v_lshlrev_b32 v3, 16, v3")
e("  v_add_f32 v3, v3, v4")
for r in range(16):
    e(f"  v_add_f32 v3, v3, v{5+r}")
e("  v_cvt_pk_bf16_f32 v3, v3, v3")
e("  buffer_store_short v3, v1, s[16:19], 0 offen")
e("K5_END:")
e("  s_endpgm")
kernel_desc("k5_fin_kernel", 24, 80)

open(f"cdna_kernels/{NAME}.s", "w").write("\n".join(L) + "\n")
print("ok", len(L))
```

```python
NAME = "sequential_preLN__sliding_block_cached__dense_activation_squared_relu__decode"
HDR = open(f"cdna_kernels/{NAME}.s.ref").read().split("; Override launch geometry")[0]

L = []
NT = "sc1 nt"
def e(s=""):
    L.append(s)

WS_Q = 0
WS_OP = 65536
WS_ML = 524288
WS_REP1 = 1048576
WS_REP2 = WS_REP1 + 36864
WS_H = WS_REP1 + 73728
WS_BYTES = 1073741824

C_SCALE = 0x3e0293a5
import struct, math
def f2h(x): return "0x%08x" % struct.unpack("<I", struct.pack("<f", x))[0]
CS = f2h(128 ** -0.5 * math.log2(math.e))

def srd(dst, ptr, nbytes):
    e(f"  s_mov_b32 s{dst}, s{ptr}")
    e(f"  s_and_b32 s{dst+1}, s{ptr+1}, 0xffff")
    e(f"  s_mov_b32 s{dst+2}, {nbytes}")
    e(f"  s_mov_b32 s{dst+3}, 0x00020000")

def wave_sum(v, t, s):
    e("  s_nop 1")
    e(f"  v_add_f32_dpp v{t}, v{v}, v{v} quad_perm:[1,0,3,2] row_mask:0xf bank_mask:0xf")
    e("  s_nop 1")
    e(f"  v_add_f32_dpp v{v}, v{t}, v{t} quad_perm:[2,3,0,1] row_mask:0xf bank_mask:0xf")
    e("  s_nop 1")
    e(f"  v_add_f32_dpp v{t}, v{v}, v{v} row_half_mirror row_mask:0xf bank_mask:0xf")
    e("  s_nop 1")
    e(f"  v_add_f32_dpp v{v}, v{t}, v{t} row_mirror row_mask:0xf bank_mask:0xf")
    e("  s_nop 1")
    for k in range(4):
        e(f"  v_readlane_b32 s{s+k}, v{v}, {16*k}")
    e("  s_nop 1")
    e(f"  v_mov_b32 v{v}, s{s}")
    for k in range(1, 4):
        e(f"  v_add_f32 v{v}, s{s+k}, v{v}")

def kernel_begin(name):
    e(".text")
    e(f".globl {name}")
    e(".p2align 8")
    e(f".type {name},@function")
    e(f"{name}:")

def kernel_desc(name, vgpr, sgpr):
    acc = (vgpr + 3) // 4 * 4
    e('.section .rodata,"a"')
    e(".p2align 6")
    e(f".amdhsa_kernel {name}")
    e(f"  .amdhsa_next_free_vgpr {vgpr}")
    e(f"  .amdhsa_next_free_sgpr {sgpr}")
    e(f"  .amdhsa_accum_offset {acc}")
    e("  .amdhsa_group_segment_fixed_size 0")
    e("  .amdhsa_kernarg_size 104")
    e("  .amdhsa_user_sgpr_count 2")
    e("  .amdhsa_user_sgpr_kernarg_segment_ptr 1")
    e("  .amdhsa_system_sgpr_workgroup_id_x 1")
    e(".end_amdhsa_kernel")

def ln_stats(vals, n, vsum, vt, s, vmean, vrstd):
    e(f"  v_add_f32 v{vsum}, v{vals[0]}, v{vals[1]}")
    for v in vals[2:]:
        e(f"  v_add_f32 v{vsum}, v{vsum}, v{v}")
    wave_sum(vsum, vt, s)
    e(f"  v_mul_f32 v{vmean}, {f2h(1.0/n)}, v{vsum}")
    e(f"  v_sub_f32 v{vt}, v{vals[0]}, v{vmean}")
    e(f"  v_mul_f32 v{vsum}, v{vt}, v{vt}")
    for v in vals[1:]:
        e(f"  v_sub_f32 v{vt}, v{v}, v{vmean}")
        e(f"  v_fmac_f32 v{vsum}, v{vt}, v{vt}")
    wave_sum(vsum, vt, s)
    e(f"  v_mov_b32 v{vt}, {f2h(1e-5)}")
    e(f"  v_fmac_f32 v{vt}, {f2h(1.0/n)}, v{vsum}")
    e(f"  v_rsq_f32 v{vrstd}, v{vt}")
    e("  s_nop 1")


C = "sc0 sc1"
def gbar(k, lab):
    e("  s_waitcnt vmcnt(0) lgkmcnt(0)")
    e("  s_barrier")
    e("  v_cmp_eq_u32 vcc, 0, v0")
    e("  s_and_saveexec_b64 s[90:91], vcc")
    e(f"  s_cbranch_execz {lab}_done")
    e("  v_mov_b32 v158, 1")
    e(f"  v_mov_b32 v159, {4*k}")
    e("  buffer_atomic_add v158, v159, s[92:95], 0 offen sc1")
    e("  s_mov_b32 s89, 0")
    e(f"{lab}_poll:")
    e("  s_sleep 4")
    e(f"  buffer_load_dword v158, v159, s[92:95], 0 offen {C}")
    e("  s_waitcnt vmcnt(0)")
    e("  v_readfirstlane_b32 s88, v158")
    e("  s_add_u32 s89, s89, 1")
    e("  s_cmp_ge_u32 s88, 256")
    e(f"  s_cbranch_scc1 {lab}_done")
    e("  s_cmp_lt_u32 s89, 400000")
    e(f"  s_cbranch_scc1 {lab}_poll")
    e(f"{lab}_done:")
    e("  s_mov_b64 exec, s[90:91]")
    e("  s_barrier")

def unpack_fma(d0, n, acc, xs):
    for i in range(n):
        for k in range(4):
            d = d0 + 4 * i + k
            e(f"  v_lshlrev_b32 v6, 16, v{d}")
            e(f"  v_and_b32 v7, 0xffff0000, v{d}")
            e(f"  v_fmac_f32 v{acc+2*k}, v6, v{xs+i}")
            e(f"  v_fmac_f32 v{acc+1+2*k}, v7, v{xs+i}")

def reduce8x576(acc, ro_v, res):
    e(f"  v_mul_u32_u24 v3, 72, v{ro_v}")
    e("  v_sub_u32 v3, v0, v3")
    e("  v_lshlrev_b32 v3, 5, v3")
    e(f"  v_mul_u32_u24 v4, 2304, v{ro_v}")
    e("  v_add_u32 v3, v3, v4")
    e(f"  ds_write_b128 v3, v[{acc}:{acc+3}]")
    e(f"  ds_write_b128 v3, v[{acc+4}:{acc+7}] offset:16")
    e("  s_waitcnt lgkmcnt(0)")
    e("  s_barrier")
    e("  v_lshlrev_b32 v3, 2, v0")
    for r in range(8):
        e(f"  ds_read_b32 v{res+r}, v3 offset:{2304*r}")
    e("  s_waitcnt lgkmcnt(0)")
    for r in range(1, 8):
        e(f"  v_add_f32 v{res}, v{res}, v{res+r}")

def div72(vd, vs, vt):
    e(f"  v_mul_u32_u24 v{vd}, 911, v{vs}")
    e(f"  v_lshrrev_b32 v{vd}, 16, v{vd}")
KN = NAME + "_kernel"
e(HDR.rstrip())
e("; @launch grid=(256,1,1) block=(576,1,1) lds=33024")
e('.amdgcn_target "amdgcn-amd-amdhsa--gfx950"')
kernel_begin(KN)
e("  s_cmp_ge_u32 s2, 256")
e("  s_cbranch_scc1 END")
e("  s_load_dwordx16 s[52:67], s[0:1], 0")
e("  s_load_dwordx8 s[68:75], s[0:1], 64")
e("  s_load_dwordx2 s[76:77], s[0:1], 96")
e("  s_waitcnt lgkmcnt(0)")
srd(4, 52, 1152)
srd(8, 54, 268435456)
srd(12, 56, 268435456)
srd(16, 58, 576*8192)
srd(20, 60, 4096*1152)
srd(24, 64, 576*9216)
srd(28, 66, 9216)
srd(32, 68, 4608*1152)
srd(36, 70, 1152)
srd(40, 72, 1152)
srd(92, 74, 256)
srd(44, 76, WS_BYTES)
e("  v_and_b32 v1, 63, v0")
e("  v_lshlrev_b32 v2, 1, v1")
for j in range(9):
    e(f"  buffer_load_ushort v{10+j}, v2, s[4:7], 0 offen offset:{128*j}")
e("  v_lshrrev_b32 v3, 1, v0")
e("  v_lshlrev_b32 v5, 1, v3")
e("  buffer_load_ushort v20, v5, s[4:7], 0 offen")
e("  buffer_load_ushort v21, v5, s[4:7], 0 offen offset:576")
e("  v_lshlrev_b32 v4, 13, v3")
e("  v_and_b32 v5, 1, v0")
e("  v_lshlrev_b32 v5, 4, v5")
e("  v_add_u32 v4, v4, v5")
e("  s_lshl_b32 s78, s2, 5")
e(f"  s_add_u32 s79, s78, {288*8192}")
e(f"  buffer_load_dwordx4 v[24:27], v4, s[16:19], s78 offen {NT}")
e(f"  buffer_load_dwordx4 v[28:31], v4, s[16:19], s79 offen {NT}")
e("  s_and_b32 s80, s2, 7")
e("  s_lshl_b32 s80, s80, 1")
e("  s_lshr_b32 s81, s2, 3")
e("  s_and_b32 s81, s81, 1")
e("  s_or_b32 s80, s80, s81")
e("  s_lshr_b32 s81, s2, 4")
e("  s_lshl_b32 s82, s80, 24")
e("  s_lshl_b32 s83, s81, 16")
e("  s_add_u32 s82, s82, s83")
e("  s_add_u32 s82, s82, 15728640")
e("  s_add_u32 s83, s82, 4096")
e("  v_lshrrev_b32 v2, 6, v0")
e("  v_lshlrev_b32 v4, 13, v2")
e("  v_lshlrev_b32 v5, 4, v1")
e("  v_add_u32 v4, v4, v5")
e("  v_cmp_gt_u32 vcc, 512, v0")
e("  s_and_saveexec_b64 s[90:91], vcc")
e("  s_cbranch_execz NOKV")
for i in range(8):
    e(f"  buffer_load_dwordx4 v[{32+4*i}:{35+4*i}], v4, s[8:11], s{82 + i//4} offen offset:{(i%4)*1024} {NT}")
for i in range(8):
    e(f"  buffer_load_dwordx4 v[{64+4*i}:{67+4*i}], v4, s[12:15], s{82 + i//4} offen offset:{(i%4)*1024} {NT}")
e("NOKV:")
e("  s_mov_b64 exec, s[90:91]")
e("  v_readfirstlane_b32 s85, v0")
e("  s_waitcnt vmcnt(16)")
e("  s_cmp_lt_u32 s85, 512")
e("  s_cbranch_scc1 W8OK")
e("  s_waitcnt vmcnt(0)")
e("W8OK:")
for j in range(9):
    e(f"  v_lshlrev_b32 v{10+j}, 16, v{10+j}")
e("  v_lshlrev_b32 v20, 16, v20")
e("  v_lshlrev_b32 v21, 16, v21")
ln_stats(list(range(10, 19)), 576, 6, 7, 48, 8, 9)
for i in range(2):
    e(f"  v_sub_f32 v{20+i}, v{20+i}, v8")
    e(f"  v_mul_f32 v{20+i}, v{20+i}, v9")
for k in range(8):
    e(f"  v_mov_b32 v{100+k}, 0")
unpack_fma(24, 2, 100, 20)
e("  v_lshlrev_b32 v4, 6, v3")
e("  v_and_b32 v5, 1, v0")
e("  v_lshlrev_b32 v5, 5, v5")
e("  v_add_u32 v4, v4, v5")
e("  ds_write_b128 v4, v[100:103]")
e("  ds_write_b128 v4, v[104:107] offset:16")
e("  s_waitcnt lgkmcnt(0)")
e("  s_barrier")
e("  v_lshrrev_b32 v4, 4, v0")
e("  v_lshlrev_b32 v4, 9, v4")
e("  v_and_b32 v5, 15, v0")
e("  v_lshlrev_b32 v5, 2, v5")
e("  v_add_u32 v4, v4, v5")
for r in range(8):
    e(f"  ds_read_b32 v{100+r}, v4 offset:{64*r}")
e("  s_waitcnt lgkmcnt(0)")
for r in range(1, 8):
    e(f"  v_add_f32 v100, v100, v{100+r}")
e("  v_lshlrev_b32 v4, 2, v0")
e("  ds_write_b32 v4, v100 offset:20480")
e("  s_waitcnt lgkmcnt(0)")
e("  s_barrier")
for p in range(36):
    e(f"  ds_read_b32 v{110+p}, v5 offset:{20480+64*p}")
e("  s_waitcnt lgkmcnt(0)")
for p in range(1, 36):
    e(f"  v_add_f32 v110, v110, v{110+p}")
e("  v_cmp_gt_u32 vcc, 16, v0")
e("  s_and_saveexec_b64 s[90:91], vcc")
e("  s_lshl_b32 s84, s2, 6")
e(f"  buffer_store_dword v110, v5, s[44:47], s84 offen {C}")
e("  s_mov_b64 exec, s[90:91]")
e("  s_cmp_ge_u32 s2, 9")
e("  s_cbranch_scc1 NOZ")
for k in range(4):
    e(f"  v_mov_b32 v{110+k}, 0")
e("  v_lshlrev_b32 v4, 4, v0")
e("  s_lshl_b32 s84, s2, 13")
e(f"  s_add_u32 s84, s84, {WS_REP1}")
e("  v_cmp_gt_u32 vcc, 512, v0")
e("  s_and_saveexec_b64 s[90:91], vcc")
e(f"  buffer_store_dwordx4 v[110:113], v4, s[44:47], s84 offen {C}")
e("  s_mov_b64 exec, s[90:91]")
e("NOZ:")
gbar(0, "B0")

e("  s_lshr_b32 s86, s2, 3")
e("  s_and_b32 s87, s2, 7")
e("  s_lshl_b32 s84, s86, 7")
e("  s_lshl_b32 s96, s87, 4")
e("  s_add_u32 s84, s84, s96")
e("  s_mul_i32 s84, s84, 1152")
e("  s_add_u32 s96, s84, 9216")
e("  v_lshlrev_b32 v9, 4, v0")
e(f"  buffer_load_dwordx4 v[160:163], v9, s[20:23], s84 offen {NT}")
e(f"  buffer_load_dwordx4 v[164:167], v9, s[20:23], s96 offen {NT}")
e("  s_cmp_ge_u32 s85, 512")
e("  s_cbranch_scc1 ATT_SKIP")
e("  v_and_b32 v3, 15, v0")
e("  v_lshlrev_b32 v3, 5, v3")
e("  s_lshl_b32 s84, s80, 10")
for k in range(4):
    e(f"  buffer_load_dwordx4 v[{96+4*k}:{99+4*k}], v3, s[44:47], s84 offen offset:{(k//2)*512 + (k%2)*16} {C}")
e("  s_waitcnt vmcnt(0)")
for k in range(8):
    e(f"  v_cvt_pk_bf16_f32 v{112+k}, v{96+2*k}, v{97+2*k}")
e("  s_nop 1")
for i in range(8):
    for k in range(4):
        for h in range(2):
            src2 = "0" if k == 0 else f"v{120+8*h+i}"
            e(f"  v_dot2_f32_bf16 v{120+8*h+i}, v{32+4*i+k}, v{112+4*h+k}, {src2}")
e("  s_nop 3")
steps = ["quad_perm:[1,0,3,2]", "quad_perm:[2,3,0,1]", "row_half_mirror", "row_mirror"]
for st in steps:
    for r in range(16):
        e(f"  v_add_f32_dpp v{120+r}, v{120+r}, v{120+r} {st} row_mask:0xf bank_mask:0xf")
e("  s_nop 1")
for h in range(2):
    b = 120 + 8 * h
    e(f"  v_max3_f32 v{152+h}, v{b}, v{b+1}, v{b+2}")
    e(f"  v_max3_f32 v{152+h}, v{152+h}, v{b+3}, v{b+4}")
    e(f"  v_max3_f32 v{152+h}, v{152+h}, v{b+5}, v{b+6}")
    e(f"  v_max_f32 v{152+h}, v{152+h}, v{b+7}")
e("  s_nop 1")
for h in range(2):
    for k in range(4):
        e(f"  v_readlane_b32 s{48+4*h+k}, v{152+h}, {16*k}")
e("  s_nop 1")
for h in range(2):
    e(f"  v_mov_b32 v{152+h}, s{48+4*h}")
    for k in range(1, 4):
        e(f"  v_max_f32 v{152+h}, s{48+4*h+k}, v{152+h}")
e(f"  v_mov_b32 v154, {CS}")
for h in range(2):
    for i in range(8):
        r = 120 + 8 * h + i
        e(f"  v_sub_f32 v{r}, v{r}, v{152+h}")
        e(f"  v_mul_f32 v{r}, v154, v{r}")
        e(f"  v_exp_f32 v{r}, v{r}")
e("  s_nop 1")
for h in range(2):
    b = 120 + 8 * h
    e(f"  v_add_f32 v{155+h}, v{b}, v{b+1}")
    for i in range(2, 8):
        e(f"  v_add_f32 v{155+h}, v{155+h}, v{b+i}")
e("  s_nop 1")
for h in range(2):
    for k in range(4):
        e(f"  v_readlane_b32 s{48+4*h+k}, v{155+h}, {16*k}")
e("  s_nop 1")
for h in range(2):
    e(f"  v_mov_b32 v{155+h}, s{48+4*h}")
    for k in range(1, 4):
        e(f"  v_add_f32 v{155+h}, s{48+4*h+k}, v{155+h}")
for k in range(16):
    e(f"  v_mov_b32 v{136+k}, 0")
for i in range(8):
    for k in range(4):
        d = 64 + 4 * i + k
        e(f"  v_lshlrev_b32 v{32+2*k}, 16, v{d}")
        e(f"  v_and_b32 v{33+2*k}, 0xffff0000, v{d}")
    for h in range(2):
        pr = 120 + 8 * h + (i & ~1)
        sel = "op_sel_hi:[1,0,1]" if i % 2 == 0 else "op_sel:[0,1,0] op_sel_hi:[1,1,1]"
        for k in range(4):
            a = 136 + 8 * h + 2 * k
            e(f"  v_pk_fma_f32 v[{a}:{a+1}], v[{32+2*k}:{33+2*k}], v[{pr}:{pr+1}], v[{a}:{a+1}] {sel}")
e("  v_lshrrev_b32 v3, 4, v0")
e("  v_lshlrev_b32 v3, 10, v3")
e("  v_and_b32 v5, 15, v0")
e("  v_lshlrev_b32 v5, 5, v5")
e("  v_add_u32 v3, v3, v5")
e("  ds_write_b128 v3, v[136:139]")
e("  ds_write_b128 v3, v[140:143] offset:16")
e("  ds_write_b128 v3, v[144:147] offset:512")
e("  ds_write_b128 v3, v[148:151] offset:528")
e("  v_mov_b32 v96, v152")
e("  v_mov_b32 v97, v155")
e("  v_mov_b32 v98, v153")
e("  v_mov_b32 v99, v156")
e("  v_lshrrev_b32 v5, 6, v0")
e("  v_lshlrev_b32 v5, 4, v5")
e("  v_and_b32 v1, 63, v0")
e("  v_cmp_eq_u32 vcc, 0, v1")
e("  s_and_saveexec_b64 s[90:91], vcc")
e("  ds_write_b128 v5, v[96:99] offset:32768")
e("  s_mov_b64 exec, s[90:91]")
e("ATT_SKIP:")
e("  s_waitcnt lgkmcnt(0)")
e("  s_barrier")
e("  v_cmp_gt_u32 vcc, 256, v0")
e("  s_and_saveexec_b64 s[90:91], vcc")
e("  s_cbranch_execz ATT_DONE")
e(f"  v_mov_b32 v154, {CS}")
e("  v_lshrrev_b32 v3, 7, v0")
e("  v_lshlrev_b32 v3, 3, v3")
for w in range(8):
    e(f"  ds_read_b64 v[{32+2*w}:{33+2*w}], v3 offset:{32768+16*w}")
e("  v_lshlrev_b32 v4, 2, v0")
for r in range(32):
    e(f"  ds_read_b32 v{64+r}, v4 offset:{1024*r}")
e("  s_waitcnt lgkmcnt(0)")
e("  v_max3_f32 v10, v32, v34, v36")
e("  v_max3_f32 v10, v10, v38, v40")
e("  v_max3_f32 v10, v10, v42, v44")
e("  v_max_f32 v10, v10, v46")
e("  v_mov_b32 v11, 0")
e("  v_mov_b32 v7, 0")
for w in range(8):
    e(f"  v_sub_f32 v8, v{32+2*w}, v10")
    e(f"  v_mul_f32 v8, v154, v8")
    e(f"  v_exp_f32 v8, v8")
    e(f"  v_add_f32 v5, v{64+4*w}, v{65+4*w}")
    e(f"  v_add_f32 v6, v{66+4*w}, v{67+4*w}")
    e(f"  v_add_f32 v5, v5, v6")
    e(f"  v_fmac_f32 v11, v8, v{33+2*w}")
    e(f"  v_fmac_f32 v7, v8, v5")
e("  v_lshrrev_b32 v3, 7, v0")
e("  v_lshlrev_b32 v3, 13, v3")
e("  v_and_b32 v4, 127, v0")
e("  v_lshlrev_b32 v8, 2, v4")
e("  v_add_u32 v3, v3, v8")
e("  s_lshl_b32 s84, s80, 14")
e("  s_lshl_b32 s96, s81, 9")
e("  s_add_u32 s84, s84, s96")
e(f"  s_add_u32 s84, s84, {WS_OP}")
e(f"  buffer_store_dword v7, v3, s[44:47], s84 offen {C}")
e("  v_cmp_eq_u32 vcc, 0, v4")
e("  s_and_b64 exec, exec, vcc")
e("  v_lshrrev_b32 v3, 7, v0")
e("  v_lshlrev_b32 v3, 7, v3")
e("  s_lshl_b32 s84, s80, 8")
e("  s_lshl_b32 s96, s81, 3")
e("  s_add_u32 s84, s84, s96")
e(f"  s_add_u32 s84, s84, {WS_ML}")
e(f"  buffer_store_dwordx2 v[10:11], v3, s[44:47], s84 offen {C}")
e("ATT_DONE:")
e("  s_mov_b64 exec, s[90:91]")
gbar(1, "B1")
e("  s_cmp_ge_u32 s2, 144")
e("  s_cbranch_scc1 NOPF")
e("  s_and_b32 s80, s2, 7")
e("  s_mul_i32 s80, s80, 18")
e("  s_lshr_b32 s81, s2, 3")
e("  s_add_u32 s80, s80, s81")
e("  s_lshl_b32 s81, s80, 6")
e("  v_lshrrev_b32 v2, 2, v0")
e("  v_mul_u32_u24 v3, 9216, v2")
e("  v_and_b32 v4, 3, v0")
e("  v_lshlrev_b32 v4, 4, v4")
e("  v_add_u32 v3, v3, v4")
for i in range(4):
    e(f"  s_add_u32 s{96+i}, s81, {1327104*i}")
for i in range(4):
    e(f"  buffer_load_dwordx4 v[{120+4*i}:{123+4*i}], v3, s[24:27], s{96+i} offen {NT}")
e("  s_mul_i32 s82, s80, 36864")
for i in range(4):
    e(f"  s_add_u32 s{96+i}, s82, {9216*i}")
for i in range(4):
    e(f"  buffer_load_dwordx4 v[{136+4*i}:{139+4*i}], v9, s[32:35], s{96+i} offen {NT}")
e("NOPF:")
div72(2, 0, 3)
e("  s_lshl_b32 s84, s86, 7")
e(f"  s_add_u32 s84, s84, {WS_ML}")
e("  v_mov_b32 v3, 0")
for k in range(8):
    e(f"  buffer_load_dwordx4 v[{40+4*k}:{43+4*k}], v3, s[44:47], s84 offen offset:{16*k} {C}")
e("  s_lshl_b32 s84, s86, 13")
e("  s_lshl_b32 s96, s87, 6")
e("  s_add_u32 s84, s84, s96")
e(f"  s_add_u32 s84, s84, {WS_OP}")
e("  s_add_u32 s96, s84, 4096")
e("  v_lshlrev_b32 v3, 2, v2")
for i in range(2):
    for s in range(16):
        e(f"  buffer_load_dword v{72+16*i+s}, v3, s[44:47], s{84 if s < 8 else 96} offen offset:{512*(s%8)+32*i} {C}")
e("  s_waitcnt vmcnt(0)")
e("  v_max3_f32 v5, v40, v42, v44")
for s in range(3, 15, 2):
    e(f"  v_max3_f32 v5, v5, v{40+2*s}, v{42+2*s}")
e("  v_max_f32 v5, v5, v70")
e(f"  v_mov_b32 v6, {CS}")
e("  v_mov_b32 v7, 0")
for s in range(16):
    e(f"  v_sub_f32 v{40+2*s}, v{40+2*s}, v5")
    e(f"  v_mul_f32 v{40+2*s}, v6, v{40+2*s}")
    e(f"  v_exp_f32 v{40+2*s}, v{40+2*s}")
    e("  s_nop 0")
    e(f"  v_fmac_f32 v7, v{40+2*s}, v{41+2*s}")
e("  v_rcp_f32 v8, v7")
for i in range(2):
    e(f"  v_mul_f32 v{10+i}, v40, v{72+16*i}")
    for s in range(1, 16):
        e(f"  v_fmac_f32 v{10+i}, v{40+2*s}, v{72+16*i+s}")
    e(f"  v_mul_f32 v{10+i}, v{10+i}, v8")
for k in range(8):
    e(f"  v_mov_b32 v{16+k}, 0")
unpack_fma(160, 2, 16, 10)
reduce8x576(16, 2, 32)
e("  s_and_b32 s84, s2, 15")
e("  s_mul_i32 s84, s84, 2304")
e(f"  s_add_u32 s84, s84, {WS_REP1}")
e("  buffer_atomic_add_f32 v32, v3, s[44:47], s84 offen sc1")
gbar(2, "B2")
e("  s_cmp_ge_u32 s2, 144")
e("  s_cbranch_scc1 FFN_DONE")
e("  v_lshlrev_b32 v4, 1, v0")
e("  buffer_load_ushort v64, v4, s[4:7], 0 offen")
e("  v_lshlrev_b32 v4, 2, v0")
for r in range(16):
    e(f"  s_mov_b32 s84, {WS_REP1 + 2304*r}")
    e(f"  buffer_load_dword v{65+r}, v4, s[44:47], s84 offen {C}")
e("  s_waitcnt vmcnt(0)")
e("  v_lshlrev_b32 v64, 16, v64")
for r in range(16):
    e(f"  v_add_f32 v64, v64, v{65+r}")
e("  ds_write_b32 v4, v64 offset:20480")
e("  s_cmp_lg_u32 s2, 0")
e("  s_cbranch_scc1 NOH")
e(f"  s_mov_b32 s84, {WS_H}")
e(f"  buffer_store_dword v64, v4, s[44:47], s84 offen {C}")
e("NOH:")
e("  s_waitcnt lgkmcnt(0)")
e("  s_barrier")
e("  v_and_b32 v5, 63, v0")
e("  v_lshlrev_b32 v5, 2, v5")
for j in range(9):
    e(f"  ds_read_b32 v{65+j}, v5 offset:{20480+256*j}")
e("  v_lshrrev_b32 v2, 2, v0")
e("  v_lshlrev_b32 v5, 2, v2")
for i in range(4):
    e(f"  ds_read_b32 v{76+i}, v5 offset:{20480+576*i}")
e("  s_waitcnt lgkmcnt(0)")
ln_stats(list(range(65, 74)), 576, 6, 7, 48, 8, 9)
for i in range(4):
    e(f"  v_sub_f32 v{76+i}, v{76+i}, v8")
    e(f"  v_mul_f32 v{76+i}, v{76+i}, v9")
for k in range(8):
    e(f"  v_mov_b32 v{80+k}, 0")
unpack_fma(120, 4, 80, 76)
e("  v_lshlrev_b32 v3, 7, v2")
e("  v_and_b32 v4, 3, v0")
e("  v_lshlrev_b32 v4, 5, v4")
e("  v_add_u32 v3, v3, v4")
e("  ds_write_b128 v3, v[80:83]")
e("  ds_write_b128 v3, v[84:87] offset:16")
e("  s_waitcnt lgkmcnt(0)")
e("  s_barrier")
e("  v_lshrrev_b32 v3, 5, v0")
e("  v_lshlrev_b32 v3, 10, v3")
e("  v_and_b32 v4, 31, v0")
e("  v_lshlrev_b32 v4, 2, v4")
e("  v_add_u32 v3, v3, v4")
for r in range(8):
    e(f"  ds_read_b32 v{80+r}, v3 offset:{128*r}")
e("  s_waitcnt lgkmcnt(0)")
for r in range(1, 8):
    e(f"  v_add_f32 v80, v80, v{80+r}")
e("  v_lshlrev_b32 v3, 2, v0")
e("  ds_write_b32 v3, v80 offset:18432")
e("  s_waitcnt lgkmcnt(0)")
e("  s_barrier")
for p in range(18):
    e(f"  ds_read_b32 v{80+p}, v4 offset:{18432+128*p}")
e("  v_lshlrev_b32 v5, 1, v0")
e("  v_and_b32 v5, 63, v5")
e("  buffer_load_ushort v100, v5, s[28:31], s81 offen")
e("  s_waitcnt vmcnt(0) lgkmcnt(0)")
for p in range(1, 18):
    e(f"  v_add_f32 v80, v80, v{80+p}")
e("  v_lshlrev_b32 v100, 16, v100")
e("  v_add_f32 v80, v80, v100")
e("  v_max_f32 v80, 0, v80")
e("  v_mul_f32 v80, v80, v80")
e("  s_barrier")
e("  ds_write_b32 v4, v80 offset:22800")
e("  s_waitcnt lgkmcnt(0)")
e("  s_barrier")
div72(2, 0, 3)
e("  v_lshlrev_b32 v5, 2, v2")
for i in range(4):
    e(f"  ds_read_b32 v{76+i}, v5 offset:{22800+32*i}")
for k in range(8):
    e(f"  v_mov_b32 v{80+k}, 0")
e("  s_waitcnt lgkmcnt(0)")
unpack_fma(136, 4, 80, 76)
reduce8x576(80, 2, 32)
e("  s_and_b32 s84, s2, 15")
e("  s_mul_i32 s84, s84, 2304")
e(f"  s_add_u32 s84, s84, {WS_REP2}")
e("  buffer_atomic_add_f32 v32, v3, s[44:47], s84 offen sc1")
e("FFN_DONE:")
gbar(3, "B3")
e("  s_cmp_lg_u32 s2, 0")
e("  s_cbranch_scc1 END")
e("  v_lshlrev_b32 v1, 1, v0")
e("  v_lshlrev_b32 v2, 2, v0")
e("  buffer_load_ushort v3, v1, s[36:39], 0 offen")
for r in range(16):
    e(f"  s_mov_b32 s84, {WS_REP2 + 2304*r}")
    e(f"  buffer_load_dword v{5+r}, v2, s[44:47], s84 offen {C}")
e("  s_waitcnt vmcnt(0)")
e("  v_lshlrev_b32 v3, 16, v3")
e("  v_add_f32 v3, v3, v64")
for r in range(16):
    e(f"  v_add_f32 v3, v3, v{5+r}")
e("  v_cvt_pk_bf16_f32 v3, v3, v3")
e("  buffer_store_short v3, v1, s[40:43], 0 offen")
e("END:")
e("  s_endpgm")
kernel_desc(KN, 168, 102)
open(f"cdna_kernels/{NAME}.s", "w").write("\n".join(L) + "\n")
print("ok", len(L))
```
